```python
import torch

def _softmax(x, axis=-1):
    return torch.softmax(x, dim=axis)
def _gelu(x):
    return torch.nn.functional.gelu(x, approximate="tanh")
def _silu(x):
    return torch.nn.functional.silu(x)
def _sigmoid(x):
    return torch.sigmoid(x)
def _layernorm(x, axis=-1, eps=1e-5):
    m = x.mean(dim=axis, keepdim=True)
    v = x.var(dim=axis, keepdim=True, unbiased=False)
    return (x - m) / torch.sqrt(v + eps)
def _scatter_add(tgt, idx, src, axis=0):
    return tgt.clone().index_add_(axis, idx, src)
def _segment_sum(src, seg, n):
    out = torch.zeros((n,) + src.shape[1:], dtype=src.dtype)
    return out.index_add_(0, seg, src)
def _pad(x, pw):
    flat = tuple(v for pair in reversed(pw) for v in pair)
    return torch.nn.functional.pad(x, flat)

kernel_name = 'recurrent_scan__sliding_local_dilated__dense_activation_squared_relu__prompt'

def setup_inputs():

    _w = (lambda a: (lambda t: t.to(torch.bfloat16) if t.is_floating_point() else t)(torch.as_tensor(a)))
    def _A_setup():
        B, S, D = 1, 2048, 512
        return {
            "x": _w((lambda *s: torch.randn(*s, dtype=torch.bfloat16) * 0.05)(B, S, D)),
            "wqkv": _w((lambda *s: torch.randn(*s, dtype=torch.bfloat16) * 0.05)(D, 3 * D)),
            "wo": _w((lambda *s: torch.randn(*s, dtype=torch.bfloat16) * 0.05)(D, D)),
        }
    _A_in = _A_setup()

    def _B_setup():
        B, S, D, F = 1, 2048, 512, 1792
        return {
            "x": _w((lambda *s: torch.randn(*s, dtype=torch.bfloat16) * 0.05)(B, S, D)),
            "w1": _w((lambda *s: torch.randn(*s, dtype=torch.bfloat16) * 0.05)(D, F)),
            "b1": _w((lambda *s: torch.randn(*s, dtype=torch.bfloat16) * 0.4)(F)),
            "w2": _w((lambda *s: torch.randn(*s, dtype=torch.bfloat16) * 0.05)(F, D)),
            "b2": _w((lambda *s: torch.randn(*s, dtype=torch.bfloat16) * 0.8)(D)),
        }
    _B_in = _B_setup()

    return {
        "A_x": _A_in["x"],
        "A_wqkv": _A_in["wqkv"],
        "A_wo": _A_in["wo"],
        "B_x": _B_in["x"],
        "B_w1": _B_in["w1"],
        "B_b1": _B_in["b1"],
        "B_w2": _B_in["w2"],
        "B_b2": _B_in["b2"],
    }

def reference(A_x, A_wqkv, A_wo, B_x, B_w1, B_b1, B_w2, B_b2):
    def _A_ref(x, wqkv, wo):
        B, S, D = x.shape
        H = 32; Dh = D // H
        W, dil = 8, 2
        qkv = (lambda x, *d: x.permute(*d))((x @ wqkv).reshape(B, S, 3, H, Dh), 2, 0, 3, 1, 4)
        q, k, v = qkv[0], qkv[1], qkv[2]
        scale = Dh ** -0.5
        pos = torch.arange(S)
        off = torch.arange(W) * dil
        idx = pos[:, None] - off[None, :]
        mask = idx >= 0
        idx_c = torch.where(mask, idx, 0).reshape(-1)
        kg = k[:, :, idx_c, :].reshape(B, H, S, W, Dh)
        vg = v[:, :, idx_c, :].reshape(B, H, S, W, Dh)
        logits = torch.einsum("bhsd,bhswd->bhsw", q, kg) * scale
        logits = torch.where(mask[None, None, :, :], logits, -1e9)
        attn = _softmax(logits, axis=-1)
        o = torch.einsum("bhsw,bhswd->bhsd", attn, vg)
        return (lambda x, *d: x.permute(*d))(o, 0, 2, 1, 3).reshape(B, S, D) @ wo

    def _B_ref(x, w1, b1, w2, b2):
        h = torch.einsum("bsd,df->bsf", x, w1) + b1
        zero = torch.zeros_like(h)
        r = torch.where(h > zero, h, zero)
        h = r * r
        out = torch.einsum("bsf,fd->bsd", h, w2) + b2
        return out

    x = A_x
    xn = _layernorm(x, axis=-1)
    s = _A_ref(xn, A_wqkv, A_wo)
    g = _silu(_B_ref(xn, B_w1, B_b1, B_w2, B_b2))
    return x + s * g
```

```python
import re

TRANS = ("v_exp_f32", "v_log_f32", "v_rcp_f32", "v_rsq_f32", "v_sqrt_f32", "v_sin_f32", "v_cos_f32")

def regs_of(op):
    op = op.strip()
    op = re.sub(r"^(-|abs\(|\|)+", "", op).rstrip(")|")
    m = re.fullmatch(r"([vsa])(\d+)", op)
    if m: return {(m.group(1), int(m.group(2)))}
    m = re.fullmatch(r"([vsa])\[(\d+):(\d+)\]", op)
    if m: return {(m.group(1), i) for i in range(int(m.group(2)), int(m.group(3)) + 1)}
    if op in ("vcc", "vcc_lo", "vcc_hi"): return {("vcc", 0)}
    if op in ("exec", "exec_lo", "exec_hi"): return {("exec", 0)}
    if op == "m0": return {("m0", 0)}
    return set()

class Ins:
    __slots__ = ("text", "mn", "rd", "wr", "cls", "ws", "srcC", "store_data", "dpp")

def split_ops(rest):
    out, depth, cur = [], 0, ""
    for ch in rest:
        if ch in "[(": depth += 1
        if ch in "])": depth -= 1
        if ch == "," and depth == 0:
            out.append(cur.strip()); cur = ""
        else: cur += ch
    if cur.strip(): out.append(cur.strip())
    return out

def parse(text):
    t = text.split(";")[0].strip()
    parts = t.split(None, 1)
    mn = parts[0]; rest = parts[1] if len(parts) > 1 else ""
    ops = split_ops(rest)
    mods = ""
    if ops:
        sp = ops[-1].split(None, 1)
        if len(sp) > 1 and not ops[-1].startswith("abs("):
            ops[-1] = sp[0]; mods = sp[1]
    I = Ins(); I.text = text; I.mn = mn; I.rd = set(); I.wr = set(); I.ws = 1; I.srcC = set(); I.store_data = set()
    I.dpp = ("_dpp" in mn) or ("row_" in mods) or ("quad_perm" in mods) or ("wave_" in mods)
    R = [regs_of(o) for o in ops]
    def rd(idx):
        for i in idx:
            if i < len(R): I.rd |= R[i]
    base = mn.replace("_e32", "").replace("_e64", "").replace("_dpp", "").replace("_sdwa", "")
    if mn == "s_nop":
        I.cls = "nop"; I.ws = int(ops[0], 0) + 1
    elif mn.startswith("v_mfma"):
        I.cls = "mfma"; I.wr = R[0]; rd([1, 2, 3]); I.srcC = R[3]
    elif mn.startswith("v_cmp"):
        I.cls = "valu"; I.wr = R[0]; rd(range(1, len(R)))
        if mn.startswith("v_cmpx"): I.wr |= {("exec", 0)}
    elif base == "v_writelane_b32":
        I.cls = "valu"; I.wr = R[0]; rd(range(1, len(R)))
    elif base in ("v_readfirstlane_b32", "v_readlane_b32"):
        I.cls = "rdlane"; I.wr = R[0]; rd(range(1, len(R)))
    elif base.startswith("v_permlane"):
        I.cls = "perml"; I.wr = R[0] | R[1]; rd([0, 1])
    elif mn.startswith("v_"):
        I.cls = "trans" if base in TRANS else ("dot" if base.startswith("v_dot") else "valu")
        I.wr = R[0]
        st = 1
        if base in ("v_add_co_u32", "v_sub_co_u32", "v_addc_co_u32", "v_subb_co_u32", "v_subrev_co_u32"):
            I.wr |= R[1]; st = 2
        rd(range(st, len(R)))
        if base in ("v_fmac_f32", "v_dot2c_f32_bf16", "v_pk_fmac_f16") or I.dpp: I.rd |= R[0]
        if base == "v_cndmask_b32" and len(R) == 3: I.rd |= {("vcc", 0)}
    elif mn.startswith("ds_read") or mn.startswith("ds_bpermute") or mn.startswith("ds_swizzle"):
        I.cls = "dsr"; I.wr = R[0]; rd(range(1, len(R)))
    elif mn.startswith("ds_"):
        I.cls = "dsw"; rd(range(len(R)))
    elif mn.startswith("buffer_load") or mn.startswith("global_load"):
        if " lds" in (" " + mods):
            I.cls = "dma"; rd(range(len(R))); I.rd |= {("m0", 0)}
        else:
            I.cls = "vld"; I.wr = R[0]; rd(range(1, len(R)))
    elif mn.startswith("buffer_store"):
        I.cls = "vst"; rd(range(len(R)))
        if "x4" in mn or "x3" in mn: I.store_data = R[0]
    elif mn.startswith("global_store"):
        I.cls = "vst"; rd(range(len(R)))
        if "x4" in mn or "x3" in mn: I.store_data = R[1]
    elif mn.startswith("buffer_atomic"):
        I.cls = "vst"; rd(range(len(R)))
        if "sc0" in mods: I.wr = R[0]
    elif mn.startswith("s_"):
        I.cls = "salu"
        nodst = ("s_cmp", "s_waitcnt", "s_barrier", "s_branch", "s_cbranch", "s_endpgm", "s_sleep", "s_setprio", "s_bitcmp", "s_setpc")
        if mn.startswith(nodst): rd(range(len(R)))
        else:
            I.wr = R[0] if R else set(); rd(range(1, len(R)))
            if "saveexec" in mn: I.wr |= {("exec", 0)}
    else:
        raise ValueError("unknown instr " + text)
    return I

VALUISH = ("valu", "trans", "dot", "rdlane", "perml")
VMEM = ("vld", "vst", "dma")

def need(p, c):
    n = 0
    pv = {r for r in p.wr if r[0] in "va"}
    ps = {r for r in p.wr if r[0] in ("s", "vcc")}
    c_rdv = {r for r in c.rd if r[0] in "va"}
    c_wrv = {r for r in c.wr if r[0] in "va"}
    if p.cls in VALUISH:
        if c.cls == "mfma" and pv & c.rd: n = max(n, 2)
        if c.dpp and pv & c.rd: n = max(n, 2)
        if c.cls == "perml" and pv & c.rd: n = max(n, 2)
        if c.cls == "rdlane" and pv & c.rd: n = max(n, 1)
        if ps & c.rd:
            if c.cls in VMEM: n = max(n, 5)
            elif c.cls == "rdlane": n = max(n, 4)
            elif c.cls in VALUISH or c.cls == "mfma": n = max(n, 2)
            elif c.cls == "salu": n = max(n, 1)
        if ("exec", 0) in p.wr:
            if c.dpp: n = max(n, 5)
            if c.cls in ("rdlane", "perml", "mfma"): n = max(n, 4)
        if p.cls == "trans" and c.cls in VALUISH and c.cls != "trans" and pv & c.rd: n = max(n, 1)
        if p.cls == "trans" and c.cls == "trans" and pv & c.rd: n = max(n, 1)
        if p.cls == "dot":
            same = (c.mn == p.mn)
            if same:
                ops = split_ops(c.text.split(";")[0].strip().split(None, 1)[1])
                ab = regs_of(ops[1]) | regs_of(ops[2].split()[0])
                if pv & ab: n = max(n, 3)
            elif (pv & (c.rd | c.wr)): n = max(n, 3)
    if p.cls == "mfma":
        passes = 8 if "32x32x16" in p.mn else 4
        big = {8: 12, 4: 8}[passes]
        if c.cls == "mfma":
            ops = split_ops(c.text.split(";")[0].strip().split(None, 1)[1])
            ab = regs_of(ops[1]) | regs_of(ops[2])
            if pv & ab: n = max(n, big)
            if pv & c.srcC and not (c.srcC == pv and c.mn == p.mn): n = max(n, big - 2)
            if pv & c.wr and not (c.wr == pv): n = max(n, big - 2)
        elif pv & (c.rd | c.wr): n = max(n, big)
        if c.cls in VALUISH and (p.srcC & c_wrv): n = max(n, {8: 7, 4: 3}[passes])
    if p.store_data and (p.store_data & c_wrv): n = max(n, 2)
    if p.cls == "salu" and ("m0", 0) in p.wr and c.cls == "dma": n = max(n, 1)
    if p.cls == "salu" and ("exec", 0) in p.wr and c.dpp: n = max(n, 1)
    return n

class Asm:
    def __init__(self):
        self.out = []; self.hist = []; self.vq = []; self.lq = []; self.uid = 0; self.nins = 0
    def raw(self, t): self.out.append(t)
    def comment(self, t): self.out.append("  ; " + t)
    def label(self, name):
        self.out.append(name + ":")
    def newlabel(self, p="L"):
        self.uid += 1; return f"{p}_{self.uid}"
    def I(self, text, tag=None):
        c = parse(text)
        d = 0; req = 0
        for p in reversed(self.hist):
            r = need(p, c) - d
            if r > req: req = r
            d += p.ws
            if d > 24: break
        while req > 0:
            k = min(req, 16)
            self._emit(parse(f"s_nop {k-1}")); req -= k
        self._emit(c)
        if c.cls in VMEM: self.vq.append(tag)
        if c.cls in ("dsr", "dsw"): self.lq.append(tag)
    def _emit(self, c):
        self.out.append("  " + c.text); self.hist.append(c); self.hist = self.hist[-30:]; self.nins += 1
    def L(self, multi, tag=None):
        for t in multi.strip().split("\n"):
            t = t.strip()
            if t: self.I(t, tag)
    def _n(self, q, tags):
        if not isinstance(tags, (list, tuple, set)): tags = [tags]
        idx = [i for i, t in enumerate(q) if t in tags]
        if not idx: return None
        return len(q) - 1 - max(idx)
    def wait(self, vm=None, lg=None):
        s = []
        if vm is not None:
            n = 0 if vm == "all" else self._n(self.vq, vm)
            if n is not None:
                n2 = min(n, 63); s.append(f"vmcnt({n2})"); self.vq = self.vq[len(self.vq) - n2:] if n2 else []
        if lg is not None:
            n = 0 if lg == "all" else self._n(self.lq, lg)
            if n is not None:
                n2 = min(n, 15); s.append(f"lgkmcnt({n2})"); self.lq = self.lq[len(self.lq) - n2:] if n2 else []
        if s: self.I("s_waitcnt " + " ".join(s))
    def state(self): return (list(self.vq), list(self.lq), list(self.hist))
    def restore(self, st): self.vq, self.lq, self.hist = list(st[0]), list(st[1]), list(st[2])
    def fence(self, n=12):
        while n > 0:
            k = min(n, 16); self._emit(parse(f"s_nop {k-1}")); n -= k
```

```python
import sys, argparse
from asmlib import Asm

NAME = "recurrent_scan__sliding_local_dilated__dense_activation_squared_relu__prompt"
KN = NAME + "_kernel"

ACT = 0x0
RG = 0xA00000
CG = 0xA10000
HK = 0xA40000
HF = 0xAC0000
FL = 0xAD0000
EP = 0xAE0000
WS_SIZE = 0xB00000
STAMP_OFF = 0xF000000
OOB = 0x7FF00000
KB = 65536; KVROW = 144; VB = KB + 144 * KVROW
FR = 110592; FRS = 12288
MISC = 159744
LDS_BYTES = 163840
sX, sWQ, sWO, sW1, sB1, sW2, sB2, sOUT, sDBG, sWSp = 8, 10, 12, 16, 18, 20, 22, 24, 26, 28
SX, SW, SWS, SC, SO, SB = 32, 36, 40, 44, 48, 52
sWV, sG, sJ, sT, sMI, sH, sS, sXo, sWo_, sM0, sG3, sMH, sNT3, sColA, sColP, sColS, sKsA, sE, sONE, sLO1, sHI1 = range(56, 77)
sRet = 78
sAct = 77
sFlg = 80
sKsP, sKsS = 81, 82
t0, t1, t2, t3, t4, t5 = 84, 85, 86, 87, 88, 89
sMsk = 90
STAMP0 = 92

def srd(n): return f"s[{n}:{n+3}]"
def vr(a, n): return f"v[{a}:{a+n-1}]"

vLane = 1
vXo0, vXo1, vWo, vPo, vSo = 2, 3, 4, 5, 6
vXa = 8
vWa = 12
vPa = 14
vL16 = 15
vBaug = 16
vR = 20
vAaug = 22
vAug3 = 30
vAug2 = 60
WF = 32
TMP = 48
ACC = 64
ACCB = 96
T2 = 112
XR = 128

class K(Asm):
    def __init__(self, stamps=False):
        super().__init__(); self.stamps = stamps; self.nst = 0
    def stamp(self, i):
        if self.stamps and i < 5:
            self.I(f"s_memrealtime s[{STAMP0+2*i}:{STAMP0+2*i+1}]")
    def dma(self, s, voff, soff, m0base, m0imm, tag, mods=""):
        self.I(f"s_add_u32 m0, s{m0base}, {m0imm}")
        self.I(f"buffer_load_dwordx4 v{voff}, {srd(s)}, s{soff} offen {mods} lds".replace("  ", " "), tag)
    def mk_srd(self, d, p, size):
        self.L(f"s_mov_b32 s{d}, s{p}\ns_mov_b32 s{d+1}, s{p+1}\ns_mov_b32 s{d+2}, {size}\ns_mov_b32 s{d+3}, 0x20000")

def stage_dma(a, st, tag):
    sl = (st % 4) * 32768
    a.dma(SX, vXo0, sXo, sM0, sl, tag)
    a.dma(SX, vXo1, sXo, sM0, sl + 1024, tag)
    a.I(f"s_lshl_b32 s{t0}, s{sS}, 2")
    a.dma(SW, vWo, sWo_, sM0, sl + 2048, tag)
    a.I(f"s_add_u32 s{t0}, s{t0}, s{sWo_}")
    a.dma(SW, vWo, t0, sM0, sl + 3072, tag)
    a.I(f"s_add_u32 s{sXo}, s{sXo}, 128")
    a.I(f"s_lshl_b32 s{t0}, s{sS}, 6")
    a.I(f"s_add_u32 s{sWo_}, s{sWo_}, s{t0}")

def prologue(a):
    a.L(f"""
    s_cmp_ge_u32 s2, 256
    s_cbranch_scc1 L_end
    s_load_dwordx16 s[8:23], s[0:1], 0
    s_load_dwordx4 s[24:27], s[0:1], 64
    s_load_dwordx2 s[28:29], s[0:1], 80
    """)
    a.stamp(0)
    a.L(f"""
    v_lshrrev_b32 v7, 6, v0
    v_and_b32 v{vLane}, 63, v0
    s_and_b32 s{t0}, s2, 7
    s_lshr_b32 s{t1}, s2, 3
    v_readfirstlane_b32 s{sWV}, v7
    s_lshr_b32 s{sG}, s{t0}, 2
    s_lshl_b32 s{sG}, s{sG}, 3
    s_and_b32 s{t2}, s{t1}, 7
    s_add_u32 s{sG}, s{sG}, s{t2}
    s_lshr_b32 s{sJ}, s{t1}, 3
    s_lshl_b32 s{sJ}, s{sJ}, 2
    s_and_b32 s{t2}, s{t0}, 3
    s_add_u32 s{sJ}, s{sJ}, s{t2}
    v_lshrrev_b32 v9, 4, v{vLane}
    v_and_b32 v8, 7, v{vLane}
    v_lshrrev_b32 v10, 3, v{vLane}
    v_xor_b32 v11, v8, v9
    v_lshlrev_b32 v11, 4, v11
    v_lshl_add_u32 v{vXo0}, v10, 10, v11
    v_xor_b32 v{vXo1}, 64, v{vXo0}
    v_add_u32 v{vXo1}, 8192, v{vXo1}
    v_lshlrev_b32 v{vL16}, 4, v{vLane}
    s_lshl_b32 s{sM0}, s{sWV}, 12
    s_lshl_b32 s{sXo}, s{sG}, 17
    s_lshl_b32 s{t2}, s{sWV}, 14
    s_add_u32 s{sXo}, s{sXo}, s{t2}
    """)
    a.L(f"""
    s_sub_u32 s{t3}, s{sJ}, 8
    s_mul_i32 s{t4}, s{t3}, 448
    s_and_b32 s{t5}, s{sJ}, 1
    s_lshl_b32 s{t5}, s{t5}, 6
    s_add_u32 s{sColA}, s{t4}, s{t5}
    s_lshl_b32 s{t2}, s{sJ}, 7
    s_add_u32 s{t3}, s{t2}, 1024
    s_cmp_ge_u32 s{sJ}, 8
    s_cselect_b32 s{sColA}, s{sColA}, s{t3}
    s_cselect_b32 s{sS}, 512, 0
    s_cselect_b32 s{t3}, 7, 10
    s_add_u32 s{sS}, s{sS}, 3072
    v_and_b32 v12, 15, v{vLane}
    v_lshlrev_b32 v13, 2, v9
    v_xor_b32 v12, v12, v13
    v_lshrrev_b32 v13, 3, v12
    v_lshlrev_b32 v13, s{t3}, v13
    v_and_b32 v12, 7, v12
    v_lshl_add_u32 v12, v12, 4, v13
    v_mul_u32_u24 v13, s{sS}, v9
    v_add_u32 v{vWo}, v12, v13
    s_lshl_b32 s{t3}, s{sWV}, 3
    s_mul_i32 s{sWo_}, s{t3}, s{sS}
    s_add_u32 s{sWo_}, s{sWo_}, s{sColA}
    s_waitcnt lgkmcnt(0)
    s_mov_b32 s{t3}, {EP}
    s_load_dword s{sE}, s[{sWSp}:{sWSp+1}], s{t3}
    """)
    a.mk_srd(SX, sX, 0x200000)
    a.L(f"""
    s_cmp_ge_u32 s{sJ}, 8
    s_cselect_b32 s{SW}, s{sW1}, s{sWQ}
    s_cselect_b32 s{SW+1}, s{sW1+1}, s{sWQ+1}
    s_lshl_b32 s{SW+2}, s{sS}, 9
    s_mov_b32 s{SW+3}, 0x20000
    s_lshl_b32 s{t2}, s2, 3
    s_add_u32 s{t2}, s{t2}, s{sWV}
    s_lshl_b32 s{t2}, s{t2}, 10
    """)
    a.I(f"buffer_load_dwordx4 v[32:35], v{vL16}, {srd(SX)}, s{t2} offen", "prow")
    a.L(f"""
    s_lshr_b32 s{t2}, s2, 2
    s_and_b32 s{t3}, s2, 3
    s_cmp_ge_u32 s{t2}, 24
    s_cselect_b32 s{SC}, s{sW1}, s{sWQ}
    s_cselect_b32 s{SC+1}, s{sW1+1}, s{sWQ+1}
    s_cselect_b32 s{t4}, 512, 0
    s_cselect_b32 s{t5}, 24, 0
    s_add_u32 s{t4}, s{t4}, 3072
    s_lshl_b32 s{SC+2}, s{t4}, 9
    s_mov_b32 s{SC+3}, 0x20000
    s_cmp_ge_u32 s2, 208
    s_cselect_b32 s{SC+2}, 0, s{SC+2}
    s_sub_u32 s{t5}, s{t2}, s{t5}
    s_lshl_b32 s{t5}, s{t5}, 7
    s_lshl_b32 s{t3}, s{t3}, 7
    s_lshl_b32 s{t2}, s{sWV}, 4
    s_add_u32 s{t3}, s{t3}, s{t2}
    s_mul_i32 s{t3}, s{t3}, s{t4}
    s_add_u32 s{t3}, s{t3}, s{t5}
    v_mul_u32_u24 v13, s{t4}, v10
    v_lshl_add_u32 v13, v8, 4, v13
    s_lshl_b32 s{t4}, s{t4}, 3
    s_add_u32 s{t4}, s{t4}, s{t3}
    """)
    a.I(f"buffer_load_dwordx4 v[36:39], v13, {srd(SC)}, s{t3} offen", "pcol")
    a.I(f"buffer_load_dwordx4 v[40:43], v13, {srd(SC)}, s{t4} offen", "pcol")
    for st in range(4):
        stage_dma(a, st, f"st{st}")
    a.L(f"""
    s_getpc_b64 s[{t0}:{t1}]
    """)
    a.label("L_cpf")
    a.L(f"""
    v_lshlrev_b32 v12, 7, v0
    v_min_u32 v12, L_codeend-L_cpf-4, v12
    """)
    a.I(f"global_load_dword v62, v12, s[{t0}:{t1}]", "cpf")
    a.mk_srd(SWS, sWSp, WS_SIZE)
    a.L(f"""
    s_and_b32 s{sMI}, s{sWV}, 3
    s_lshr_b32 s{sH}, s{sWV}, 2
    s_and_b32 s{t0}, s2, 7
    s_lshr_b32 s{t1}, s2, 3
    s_lshl_b32 s{sG3}, s{t0}, 1
    s_and_b32 s{t2}, s{t1}, 1
    s_add_u32 s{sG3}, s{sG3}, s{t2}
    s_bfe_u32 s{sMH}, s{t1}, 0x10001
    s_lshr_b32 s{sNT3}, s{t1}, 2
    s_mov_b32 s{sONE}, 0x3f803f80
    s_mov_b32 s{sLO1}, 0x00003f80
    s_mov_b32 s{sHI1}, 0x3f800000
    """)
    a.L(f"""
    s_add_u32 s{sColP}, s{sColA}, 256
    s_sub_u32 s{t3}, s{sJ}, 8
    s_mul_i32 s{t4}, s{t3}, 448
    s_add_u32 s{t5}, s{t4}, 384
    s_mul_i32 s{t2}, s{t3}, 14
    s_add_u32 s{t2}, s{t2}, 32
    s_add_u32 s{t0}, s{t2}, 2
    s_add_u32 s{t1}, s{t2}, 12
    s_bitcmp1_b32 s{sJ}, 0
    s_cselect_b32 s{sColS}, s{t4}, s{t5}
    s_cselect_b32 s{sKsA}, s{t0}, s{t2}
    s_cselect_b32 s{sKsS}, s{t2}, s{t1}
    s_add_u32 s{sKsP}, s{sKsA}, 8
    s_lshl_b32 s{t2}, s{sJ}, 7
    s_cmp_ge_u32 s{sJ}, 8
    s_cselect_b32 s{sColP}, s{sColP}, s{t2}
    s_lshl_b32 s{t2}, s{sG}, 2
    s_add_u32 s{t2}, s{t2}, s{sMI}
    s_mul_i32 s{sAct}, s{t2}, {144*1024}
    s_lshl_b32 s{t2}, s{sG}, 1
    s_lshr_b32 s{t3}, s{sMI}, 1
    s_add_u32 s{t2}, s{t2}, s{t3}
    s_lshl_b32 s{t2}, s{t2}, 4
    s_add_u32 s{t2}, s{t2}, s{sJ}
    s_lshl_b32 s{t2}, s{t2}, 4
    s_and_b32 s{t3}, s{sMI}, 1
    s_lshl_b32 s{t3}, s{t3}, 1
    s_add_u32 s{t3}, s{t3}, s{sH}
    s_lshl_b32 s{t3}, s{t3}, 2
    s_add_u32 s{t2}, s{t2}, s{t3}
    s_add_u32 s{sFlg}, s{t2}, {FL}
    """)
    a.L(f"""
    v_and_b32 v12, 1, v9
    v_lshlrev_b32 v12, 2, v12
    v_xor_b32 v12, v8, v12
    v_lshlrev_b32 v1{2}, 4, v12
    v_mul_u32_u24 v13, s{sS}, v10
    v_add_u32 v{vPo}, v12, v13
    v_lshrrev_b32 v12, 2, v{vLane}
    v_mul_u32_u24 v12, s{sS}, v12
    v_and_b32 v13, 3, v{vLane}
    v_lshl_add_u32 v{vSo}, v13, 4, v12
    """)
    a.L(f"""
    v_and_b32 v22, 1, v9
    v_lshlrev_b32 v22, 5, v22
    v_lshl_add_u32 v22, v13, 3, v22
    v_bfe_u32 v23, v{vLane}, 2, 2
    v_lshrrev_b32 v24, 5, v{vLane}
    s_lshl_b32 s{t2}, s{sH}, 1
    v_xor_b32 v25, s{t2}, v23
    v_lshlrev_b32 v26, 12, v24
    v_lshl_add_u32 v26, v23, 8, v26
    v_add_u32 v26, v26, v22
    v_add_u32 v26, 2048, v26
    v_lshl_add_u32 v{vWa}, v25, 6, v26
    v_xor_b32 v{vWa+1}, 64, v{vWa}
    """)
    a.L(f"""
    v_and_b32 v25, 31, v{vLane}
    s_lshl_b32 s{t2}, s{sMI}, 13
    v_lshrrev_b32 v26, 4, v25
    v_lshlrev_b32 v26, 12, v26
    v_and_b32 v27, 15, v25
    v_lshl_add_u32 v26, v27, 7, v26
    v_add_u32 v26, s{t2}, v26
    v_bfe_u32 v27, v25, 1, 3
    v_xor_b32 v27, v27, v24
    v_lshl_add_u32 v{vXa}, v27, 4, v26
    v_xor_b32 v{vXa+1}, 32, v{vXa}
    v_xor_b32 v{vXa+2}, 64, v{vXa}
    v_xor_b32 v{vXa+3}, 96, v{vXa}
    """)
    a.L(f"""
    v_lshl_add_u32 v26, v24, 3, v23
    v_lshl_add_u32 v26, v26, 7, v22
    v_lshrrev_b32 v27, 1, v23
    v_xor_b32 v27, s{sH}, v27
    v_lshl_add_u32 v{vPa}, v27, 6, v26
    """)
    for r in range(ACC, ACC + 32):
        a.I(f"v_mov_b32 v{r}, 0")

def prep(a):
    a.wait(vm="prow")
    a.L(f"""
    v_dot2_f32_bf16 v44, v32, s{sONE}, 0
    v_dot2_f32_bf16 v45, v32, v32, 0
    v_dot2_f32_bf16 v44, v33, s{sONE}, v44
    v_dot2_f32_bf16 v45, v33, v33, v45
    v_dot2_f32_bf16 v44, v34, s{sONE}, v44
    v_dot2_f32_bf16 v45, v34, v34, v45
    v_dot2_f32_bf16 v44, v35, s{sONE}, v44
    v_dot2_f32_bf16 v45, v35, v35, v45
    """)
    a.wait(vm="pcol")
    for i in range(4):
        a.I(f"v_dot2_f32_bf16 v{48+2*i}, v{36+i}, s{sLO1}, 0")
        a.I(f"v_dot2_f32_bf16 v{49+2*i}, v{36+i}, s{sHI1}, 0")
    for i in range(4):
        a.I(f"v_dot2_f32_bf16 v{48+2*i}, v{40+i}, s{sLO1}, v{48+2*i}")
        a.I(f"v_dot2_f32_bf16 v{49+2*i}, v{40+i}, s{sHI1}, v{49+2*i}")
    a.I("v_permlane32_swap_b32 v44, v45")
    for i in range(4):
        a.I(f"v_permlane32_swap_b32 v{48+2*i}, v{49+2*i}")
    a.I("v_add_f32 v44, v44, v45")
    for i in range(4):
        a.I(f"v_add_f32 v{48+2*i}, v{48+2*i}, v{49+2*i}")
    a.I("v_mov_b32 v45, v44")
    a.I("v_permlane16_swap_b32 v48, v50")
    a.I("v_permlane16_swap_b32 v52, v54")
    a.I("v_permlane16_swap_b32 v44, v45")
    a.L("""
    v_add_f32 v48, v48, v50
    v_add_f32 v52, v52, v54
    v_add_f32 v44, v44, v45
    """)
    a.L(f"""
    v_lshrrev_b32 v46, 4, v{vLane}
    v_and_b32 v47, 1, v46
    v_lshrrev_b32 v46, 1, v46
    v_lshl_add_u32 v46, v47, 1, v46
    v_and_b32 v47, 7, v{vLane}
    v_lshl_add_u32 v46, v47, 3, v46
    s_lshl_b32 s{t2}, s{sWV}, 8
    s_add_u32 s{t2}, s{t2}, {MISC}
    v_add_f32_dpp v48, v48, v48 row_ror:8 row_mask:0xf bank_mask:0xf
    v_add_f32_dpp v52, v52, v52 row_ror:8 row_mask:0xf bank_mask:0xf
    v_add_f32_dpp v44, v44, v44 row_ror:8 row_mask:0xf bank_mask:0xf
    v_lshl_add_u32 v46, v46, 2, s{t2}
    """)
    a.I("ds_write2_b32 v46, v48, v52 offset0:0 offset1:4", "cs")
    for r in (4, 2, 1):
        a.I(f"v_add_f32_dpp v44, v44, v44 row_ror:{r} row_mask:0xf bank_mask:0xf")
    a.L(f"""
    v_readlane_b32 s{t2}, v44, 0
    v_readlane_b32 s{t3}, v44, 32
    s_waitcnt lgkmcnt(0)
    s_barrier
    """)
    a.lq = []
    a.L(f"""
    s_mul_i32 s{sT}, s{sE}, 0x9E3779B1
    s_add_u32 s{sT}, s{sT}, 0x7F4A7C15
    s_and_b32 s{sT}, s{sT}, 0xfffffffc
    v_lshlrev_b32 v46, 2, v{vLane}
    v_add_u32 v46, {MISC}, v46
    """)
    for w in range(4):
        a.I(f"ds_read2st64_b32 v[{48+2*w}:{49+2*w}], v46 offset0:{2*w} offset1:{2*w+1}", "cs2")
    a.L(f"""
    v_mov_b32 v32, 0x3b000000
    v_mul_f32 v33, s{t2}, v32
    v_mul_f32 v34, s{t3}, v32
    v_fma_f32 v34, -v33, v33, v34
    v_max_f32 v34, 0, v34
    v_cvt_pk_bf16_f32 v35, v33, v34
    v_and_b32 v35, 0xffff0000, v35
    v_add_f32 v35, 0x3727c5ac, v35
    v_cvt_pk_bf16_f32 v35, v35, v35
    v_and_b32 v35, 0xffff0000, v35
    v_sqrt_f32 v35, v35
    v_cmp_eq_u32 vcc, 0, v{vLane}
    v_mov_b32 v37, s{sT}
    v_cvt_pk_bf16_f32 v36, v33, v35
    s_lshl_b32 s{t2}, s2, 3
    s_add_u32 s{t2}, s{t2}, s{sWV}
    s_lshl_b32 s{t2}, s{t2}, 3
    s_add_u32 s{t2}, s{t2}, {RG}
    v_mov_b32 v38, {OOB}
    v_cndmask_b32 v39, v38, 0, vcc
    """)
    a.I(f"buffer_store_dwordx2 v[36:37], v39, {srd(SWS)}, s{t2} offen sc1", "pub")
    a.mk_srd(SB, sDBG, 256)
    a.L(f"""
    s_cmp_eq_u32 s{sWV}, 0
    s_cselect_b32 s{t4}, 0, {OOB}
    v_mov_b32 v21, 1
    """)
    a.I(f"buffer_atomic_add v21, v39, {srd(SB)}, s{t4} offen sc0 sc1", "epc")
    a.wait(lg="cs2")
    a.L(f"""
    v_add_f32 v48, v48, v49
    v_add_f32 v50, v50, v51
    v_add_f32 v52, v52, v53
    v_add_f32 v54, v54, v55
    v_add_f32 v48, v48, v50
    v_add_f32 v52, v52, v54
    v_mov_b32 v41, s{sT}
    v_add_f32 v40, v48, v52
    s_lshr_b32 s{t2}, s2, 2
    s_lshl_b32 s{t2}, s{t2}, 9
    s_and_b32 s{t3}, s2, 3
    s_mul_i32 s{t3}, s{t3}, {3328*8}
    s_add_u32 s{t2}, s{t2}, s{t3}
    s_add_u32 s{t2}, s{t2}, {CG}
    s_add_u32 s{t2}, s{t2}, s{t4}
    s_cmp_ge_u32 s2, 208
    s_cselect_b32 s{t2}, {OOB}, s{t2}
    v_lshlrev_b32 v42, 3, v{vLane}
    """)
    a.I(f"buffer_store_dwordx2 v[40:41], v42, {srd(SWS)}, s{t2} offen sc1", "pub")

GV = 112
def gather_issue(a, ffn):
    for kq in range(4):
        a.I(f"s_mov_b32 s{t0}, {CG + kq*3328*8}")
        a.I(f"buffer_load_dwordx2 v[{GV+2*kq}:{GV+2*kq+1}], v124, {srd(SWS)}, s{t0} offen sc1", "gat")
    a.I(f"s_mov_b32 s{t0}, {RG}")
    a.I(f"buffer_load_dwordx2 v[{GV+8}:{GV+9}], v125, {srd(SWS)}, s{t0} offen sc1", "gat")

def gather_setup(a, ffn):
    if ffn:
        a.L(f"""
        s_lshl_b32 s{t0}, s{sWV}, 6
        s_add_u32 s{t0}, s{t0}, s{sColA}
        s_cmp_ge_u32 s{sWV}, 6
        s_cselect_b32 s{t0}, s{sColS}, s{t0}
        s_lshr_b32 s{t0}, s{t0}, 1
        s_add_u32 s{t1}, s{t0}, 1536
        """)
    else:
        a.L(f"""
        s_lshr_b32 s{t0}, s{sWV}, 1
        s_add_u32 s{t0}, s{t0}, 1
        s_cmp_ge_u32 s{t0}, 3
        s_cselect_b32 s{t0}, 0, s{t0}
        s_lshl_b32 s{t0}, s{t0}, 9
        s_and_b32 s{t1}, s{sWV}, 1
        s_lshl_b32 s{t1}, s{t1}, 5
        s_add_u32 s{t0}, s{t0}, s{t1}
        s_lshl_b32 s{t1}, s{sJ}, 6
        s_add_u32 s{t1}, s{t1}, s{t0}
        """)
    a.L(f"""
    v_and_b32 v127, 31, v{vLane}
    v_add_u32 v124, s{t1}, v127
    v_lshlrev_b32 v124, 3, v124
    s_lshl_b32 s{t2}, s{sG}, 2
    s_add_u32 s{t2}, s{t2}, s{sMI}
    s_lshl_b32 s{t2}, s{t2}, 5
    v_add_u32 v125, s{t2}, v127
    v_lshlrev_b32 v125, 3, v125
    """)
    if ffn:
        a.mk_srd(SB, sB1, 1792 * 2)
        a.L(f"""
        v_add_u32 v126, s{t0}, v127
        v_lshlrev_b32 v126, 1, v126
        """)
        a.I(f"buffer_load_ushort v{GV+10}, v126, {srd(SB)}, 0 offen", "gat")
    else:
        a.I(f"v_mov_b32 v{GV+10}, 0")
    gather_issue(a, ffn)

def gather_finish(a, ffn):
    a.wait(vm="gat")
    ok = a.newlabel("L_gok"); spin = a.newlabel("L_gspin")
    def check():
        a.L(f"""
        v_xor_b32 v126, s{sT}, v{GV+1}
        v_xor_b32 v127, s{sT}, v{GV+3}
        v_or_b32 v126, v126, v127
        v_xor_b32 v127, s{sT}, v{GV+5}
        v_or_b32 v126, v126, v127
        v_xor_b32 v127, s{sT}, v{GV+7}
        v_or_b32 v126, v126, v127
        v_xor_b32 v127, s{sT}, v{GV+9}
        v_or_b32 v126, v126, v127
        v_cmp_ne_u32 vcc, 0, v126
        """)
    check()
    a.I(f"s_cbranch_vccz {ok}")
    st = a.state()
    a.I(f"s_mov_b32 s{t5}, 0")
    a.label(spin)
    a.I("s_sleep 2")
    gather_issue(a, ffn)
    a.I("s_waitcnt vmcnt(0)")
    check()
    a.L(f"""
    s_cbranch_vccz {ok}
    s_add_u32 s{t5}, s{t5}, 1
    s_cmp_lt_u32 s{t5}, 0x8000
    s_cbranch_scc1 {spin}
    """)
    a.restore(st)
    a.label(ok)
    a.fence(2)
    a.L(f"""
    v_add_f32 v{GV}, v{GV}, v{GV+2}
    v_add_f32 v{GV+4}, v{GV+4}, v{GV+6}
    v_add_f32 v{GV}, v{GV}, v{GV+4}
    v_cvt_pk_bf16_f32 v{GV+1}, v{GV}, v{GV}
    v_and_b32 v{GV+2}, 0xffff0000, v{GV+1}
    v_sub_f32 v{GV}, v{GV}, v{GV+2}
    v_cvt_pk_bf16_f32 v{GV+2}, v{GV}, v{GV}
    v_and_b32 v{GV+3}, 0xffff0000, v{GV+2}
    v_sub_f32 v{GV}, v{GV}, v{GV+3}
    v_cvt_pk_bf16_f32 v{GV+4}, v{GV}, 0
    v_and_b32 v{GV+1}, 0xffff, v{GV+1}
    v_or_b32 v{GV+2}, v{GV+1}, v{GV+3}
    v_lshl_or_b32 v{GV+3}, v{GV+10}, 16, v{GV+4}
    v_cmp_gt_u32 vcc, 32, v{vLane}
    s_lshl_b32 s{t0}, s{sWV}, 9
    s_add_u32 s{t0}, s{t0}, {MISC}
    v_lshl_add_u32 v126, v{vLane}, 3, s{t0}
    v_cndmask_b32 v{GV+2}, 0, v{GV+2}, vcc
    v_cndmask_b32 v{GV+3}, 0, v{GV+3}, vcc
    """)
    a.I(f"ds_write_b64 v126, v[{GV+2}:{GV+3}]", "augw")
    a.L(f"""
    v_xor_b32 v{GV+8}, 0x8000, v{GV+8}
    v_and_b32 v{GV+9}, 0xffff, v{GV+8}
    v_lshl_or_b32 v{vBaug}, v{GV+9}, 16, v{GV+9}
    v_mov_b32 v{vBaug+1}, v{GV+8}
    v_mov_b32 v{vBaug+2}, 0
    v_mov_b32 v{vBaug+3}, 0
    v_and_b32 v{GV+9}, 0xffff0000, v{GV+8}
    v_rcp_f32 v{vR}, v{GV+9}
    """)
    a.wait(vm="epc")
    a.L(f"""
    v_readfirstlane_b32 s{t0}, v21
    s_add_u32 s{t1}, s{sE}, 1
    s_mov_b32 s{t2}, {EP}
    s_cmp_eq_u32 s{t0}, 255
    s_cselect_b32 s{t0}, s{t2}, {OOB}
    s_cmp_eq_u32 s{sWV}, 0
    s_cselect_b32 s{t0}, s{t0}, {OOB}
    v_mov_b32 v126, s{t1}
    v_mov_b32 v127, 0
    """)
    a.I(f"buffer_store_dword v126, v127, {srd(SWS)}, s{t0} offen sc1", "epw")

def pair_dma(a, p, tag):
    a.L(f"""
    s_lshl_b32 s{t0}, s{sWV}, 5
    s_add_u32 s{t0}, s{t0}, {256*p}
    s_mul_i32 s{t0}, s{t0}, s{sS}
    s_add_u32 s{t0}, s{t0}, s{sColP}
    s_lshl_b32 s{t1}, s{sS}, 3
    """)
    for ii in range(4):
        a.dma(SW, vPo, t0, sM0, p * 32768 + ii * 1024, tag)
        if ii < 3: a.I(f"s_add_u32 s{t0}, s{t0}, s{t1}")

def single_dma(a, tag):
    a.L(f"""
    s_lshl_b32 s{t0}, s{sWV}, 6
    s_mul_i32 s{t0}, s{t0}, s{sS}
    s_add_u32 s{t0}, s{t0}, s{sColS}
    s_lshl_b32 s{t1}, s{sS}, 4
    """)
    for ii in range(4):
        a.dma(SW, vSo, t0, sM0, 65536 + ii * 1024, tag)
        if ii < 3: a.I(f"s_add_u32 s{t0}, s{t0}, s{t1}")

def passA_reads(a, n):
    s, k = divmod(n, 4)
    if k == 0 and s in (2, 4, 6):
        for r in (vXa, vXa + 1, vXa + 2, vXa + 3, vWa, vWa + 1):
            a.I(f"v_xor_b32 v{r}, 0x10000, v{r}")
    o = (s & 1) * 32768
    wf = WF + 8 * (n & 1)
    tag = f"r{n}"
    a.I(f"ds_read_b64_tr_b16 {vr(wf,2)}, v{vWa} offset:{o + k*8192}", tag)
    a.I(f"ds_read_b64_tr_b16 {vr(wf+2,2)}, v{vWa} offset:{o + k*8192 + 1024}", tag)
    a.I(f"ds_read_b128 {vr(XR+4*n,4)}, v{vXa+k} offset:{o}", tag)
    a.I(f"ds_read_b64_tr_b16 {vr(wf+4,2)}, v{vWa+1} offset:{o + k*8192}", tag + "b")
    a.I(f"ds_read_b64_tr_b16 {vr(wf+6,2)}, v{vWa+1} offset:{o + k*8192 + 1024}", tag + "b")

def passA(a, ffn):
    a.wait(vm="st0")
    a.I("s_barrier")
    a.stamp(1)
    passA_reads(a, 0)
    for n in range(32):
        s, k = divmod(n, 4)
        wf = WF + 8 * (n & 1)
        a.wait(lg=f"r{n}")
        a.I(f"v_mfma_f32_32x32x16_bf16 {vr(ACC,16)}, {vr(wf,4)}, {vr(XR+4*n,4)}, {vr(ACC,16)}")
        a.wait(lg=f"r{n}b")
        a.I(f"v_mfma_f32_32x32x16_bf16 {vr(ACC+16,16)}, {vr(wf+4,4)}, {vr(XR+4*n,4)}, {vr(ACC+16,16)}")
        if n < 31: passA_reads(a, n + 1)
        if k == 2:
            if s == 3: gather_setup(a, ffn)
            if s == 6: gather_finish(a, ffn)
            if s == 7: a.wait(lg="augw")
            if s < 7: a.wait(vm=f"st{s+1}")
            a.I("s_barrier")
            if 1 <= s <= 4: stage_dma(a, s + 3, f"st{s+3}")
            if s == 5: pair_dma(a, 0, "wb1")
            if s == 6: pair_dma(a, 1, "wb2")
            if s == 7:
                if ffn: single_dma(a, "wb3")
                a.L(f"""
                s_lshl_b32 s{t0}, s{sH}, 10
                s_add_u32 s{t0}, s{t0}, {MISC}
                v_lshl_add_u32 v126, v{vLane}, 3, s{t0}
                s_lshl_b32 s{t0}, s{sH}, 9
                v_subrev_u32 v127, s{t0}, v126
                v_mov_b32 v{vAaug+2}, 0
                v_mov_b32 v{vAaug+3}, 0
                v_mov_b32 v{vAaug+6}, 0
                v_mov_b32 v{vAaug+7}, 0
                """)
                a.I(f"ds_read_b64 {vr(vAaug,2)}, v126", "augr")
                a.I(f"ds_read_b64 {vr(vAaug+4,2)}, v126 offset:512", "augr")
                a.I(f"ds_read_b64 {vr(vAug2,2)}, v127 offset:2048", "augr")
                a.I(f"v_subrev_u32 v127, s{t0}, v127")
                a.I(f"ds_read_b64 {vr(vAug3,2)}, v127 offset:3072", "augr")
    a.wait(lg="augr")
    a.I(f"v_mfma_f32_32x32x16_bf16 {vr(ACC,16)}, {vr(vAaug,4)}, {vr(vBaug,4)}, {vr(ACC,16)}")
    a.I(f"v_mfma_f32_32x32x16_bf16 {vr(ACC+16,16)}, {vr(vAaug+4,4)}, {vr(vBaug,4)}, {vr(ACC+16,16)}")
    a.wait(vm=["wb1", "wb2"])
    a.I("s_barrier")
    a.stamp(2)

def tile_body(a, kstr, secoff, augreg, mid=None):
    for r in range(ACCB, ACCB + 16): a.I(f"v_mov_b32 v{r}, 0")
    def rd(n):
        wf = WF + 4 * (n & 3)
        a.I(f"ds_read_b64_tr_b16 {vr(wf,2)}, v{vPa} offset:{n*kstr}", f"t{n}")
        a.I(f"ds_read_b64_tr_b16 {vr(wf+2,2)}, v{vPa} offset:{n*kstr+secoff}", f"t{n}")
    for n in range(3): rd(n)
    a.I(f"v_mov_b32 v{vAaug}, v{augreg}")
    a.I(f"v_mov_b32 v{vAaug+1}, v{augreg+1}")
    a.I(f"v_mfma_f32_32x32x16_bf16 {vr(ACCB,16)}, {vr(vAaug,4)}, {vr(vBaug,4)}, {vr(ACCB,16)}")
    for n in range(32):
        wf = WF + 4 * (n & 3)
        a.wait(lg=f"t{n}")
        a.I(f"v_mfma_f32_32x32x16_bf16 {vr(ACCB,16)}, {vr(wf,4)}, {vr(XR+4*n,4)}, {vr(ACCB,16)}")
        if n + 3 < 32: rd(n + 3)
        if mid and n == 14: mid()

def call(a, label):
    a.I(f"s_getpc_b64 s[{t0}:{t1}]")
    l = a.newlabel("L_pc")
    a.label(l)
    a.I(f"s_add_u32 s{t0}, s{t0}, {label}-{l}")
    a.I(f"s_addc_u32 s{t1}, s{t1}, 0")
    a.I(f"s_swappc_b64 s[{sRet}:{sRet+1}], s[{t0}:{t1}]")
    from asmlib import parse
    a.hist = [parse(f"v_mfma_f32_32x32x16_bf16 {vr(ACCB,16)}, {vr(WF+12,4)}, {vr(XR+124,4)}, {vr(ACCB,16)}"), parse("s_nop 0")]

def publish_flag(a, p):
    a.L(f"""
    s_add_u32 s{t0}, s{sT}, {p}
    v_mov_b32 v62, s{t0}
    v_mov_b32 v63, 0
    s_mov_b64 exec, 1
    """)
    a.I(f"buffer_store_dword v62, v63, {srd(SWS)}, s{sFlg} offen sc1", "flag")
    a.I("s_mov_b64 exec, -1")

def epi_h(a, acc, ksreg, ksadd, tag, tmp):
    for r in range(16):
        a.I(f"v_max_f32 v{acc+r}, 0, v{acc+r}")
    for r in range(16):
        a.I(f"v_mul_f32 v{acc+r}, v{acc+r}, v{acc+r}")
    for q in range(8):
        a.I(f"v_cvt_pk_bf16_f32 v{tmp+q}, v{acc+2*q}, v{acc+2*q+1}")
    a.I(f"s_add_u32 s{t0}, s{ksreg}, {ksadd}")
    a.I(f"s_lshl_b32 s{t0}, s{t0}, 10")
    a.I(f"s_add_u32 s{t0}, s{t0}, s{sAct}")
    a.I(f"buffer_store_dwordx4 {vr(tmp,4)}, v{vL16}, {srd(SWS)}, s{t0} offen sc1", tag)
    a.I(f"buffer_store_dwordx4 {vr(tmp+4,4)}, v{vL16}, {srd(SWS)}, s{t0} offen offset:1024 sc1", tag)

P_ACC = 64
P_A = 128
P_B = 192
vB3o = 2
vA3o = 3
vB3a = 4
vPoll = 6
vPolld = 7
vFx = 8
vFb = 12
NA = 8; NB = 6
sB3, sA3, sRing = 62, 63, 64

def f_order():
    ev = lambda t: [2 * t, 2 * t + 1]
    od = lambda t: [14 + 2 * t, 14 + 2 * t + 1]
    La = ev(2) + ev(3) + od(3) + od(4)
    Lb = ev(0) + ev(1) + ev(4) + od(1) + od(2) + od(5)
    Lc = ev(5) + od(6) + ev(6) + od(0)
    return La + Lb + Lc

def p3_common_setup(a):
    pass

def b3_voff(a):
    a.L(f"""
    v_bfe_u32 v126, v{vLane}, 4, 1
    v_lshlrev_b32 v126, 2, v126
    v_and_b32 v127, 7, v{vLane}
    v_xor_b32 v126, v126, v127
    v_lshrrev_b32 v127, 3, v{vLane}
    v_lshlrev_b32 v127, 10, v127
    v_lshl_add_u32 v{vB3o}, v126, 4, v127
    """)

def f_bdma(a, j, order):
    off = order[j] * 16384
    a.I(f"s_add_u32 s{t0}, s{sB3}, {off}")
    a.dma(SC, vB3o, t0, sRing, (j % NB) * 2048, f"B{j}")
    a.I(f"s_add_u32 s{t0}, s{t0}, 8192")
    a.dma(SC, vB3o, t0, sRing, (j % NB) * 2048 + 1024, f"B{j}")

def f_early(a):
    order = f_order()
    a.mk_srd(SC, sW2, 1792 * 1024)
    b3_voff(a)
    a.L(f"""
    s_mul_i32 s{sB3}, s{sMI}, {28*16384}
    s_lshl_b32 s{t0}, s{sNT3}, 7
    s_add_u32 s{sB3}, s{sB3}, s{t0}
    s_mul_i32 s{sRing}, s{sMI}, {FRS}
    s_add_u32 s{sRing}, s{sRing}, {FR}
    """)
    for j in range(NB): f_bdma(a, j, order)

def s_early(a):
    a.mk_srd(SC, sWO, 512 * 1024)
    b3_voff(a)
    a.L(f"""
    s_lshl_b32 s{t0}, s{sMI}, 17
    s_lshl_b32 s{t1}, s{sNT3}, 7
    s_add_u32 s{t0}, s{t0}, s{t1}
    s_lshl_b32 s{sRing}, s{sMI}, 14
    """)
    for j in range(16):
        a.dma(SC, vB3o, t0, sRing, j * 1024, "Wo")
        if j < 15: a.I(f"s_add_u32 s{t0}, s{t0}, 8192")

def poll_setup(a, ffn_members):
    a.L(f"""
    s_lshl_b32 s{t0}, s{sG3}, 1
    s_add_u32 s{t0}, s{t0}, s{sMH}
    s_lshl_b32 s{t0}, s{t0}, 8
    s_lshl_b32 s{t1}, s{sMI}, 5
    s_add_u32 s{t0}, s{t0}, s{t1}
    s_add_u32 s{t0}, s{t0}, {FL + (128 if ffn_members else 0)}
    v_and_b32 v{vPoll}, 7, v{vLane}
    v_lshl_add_u32 v{vPoll}, v{vPoll}, 2, s{t0}
    """)

def poll_issue(a, tag):
    a.I(f"buffer_load_dword v{vPolld}, v{vPoll}, {srd(SWS)}, 0 offen sc1", tag)

def poll_check(a, tag, mask, thr):
    a.wait(vm=tag)
    ok = a.newlabel("L_pok"); spin = a.newlabel("L_pspin")
    def chk():
        a.L(f"""
        s_add_u32 s{t0}, s{sT}, {thr}
        v_subrev_u32 v{vPolld}, s{t0}, v{vPolld}
        v_cmp_gt_u32 vcc, {4-thr}, v{vPolld}
        s_and_b32 s{t0}, vcc_lo, {mask}
        s_cmp_eq_u32 s{t0}, {mask}
        s_cbranch_scc1 {ok}
        """)
    chk()
    st = a.state()
    a.I(f"s_mov_b32 s{t5}, 0")
    a.label(spin)
    a.I("s_sleep 1")
    poll_issue(a, "x")
    a.I("s_waitcnt vmcnt(0)")
    chk()
    a.L(f"""
    s_add_u32 s{t5}, s{t5}, 1
    s_cmp_lt_u32 s{t5}, 0x20000
    s_cbranch_scc1 {spin}
    """)
    a.restore(st)
    a.label(ok)

def p3_addr(a, f):
    a.L(f"""
    v_bfe_u32 v22, v{vLane}, 2, 2
    v_lshrrev_b32 v23, 5, v{vLane}
    v_lshl_add_u32 v23, v23, {2 if f else 4}, v22
    v_lshlrev_b32 v23, 7, v23
    v_lshrrev_b32 v22, 1, v22
    v_lshl_add_u32 v23, v22, 6, v23
    v_bfe_u32 v22, v{vLane}, 4, 1
    v_lshl_add_u32 v23, v22, 5, v23
    v_and_b32 v22, 3, v{vLane}
    v_lshl_add_u32 v23, v22, 3, v23
    v_add_u32 v{vB3a}, s{sRing}, v23
    v_xor_b32 v{vB3a+1}, 64, v{vB3a}
    v_add_u32 v{vA3o}, {144*1024}, v{vL16}
    s_lshl_b32 s{t0}, s{sG3}, 1
    s_add_u32 s{t0}, s{t0}, s{sMH}
    s_mul_i32 s{sA3}, s{t0}, {2*144*1024}
    s_mul_i32 s{t0}, s{sMI}, {(28 if f else 8)*1024}
    s_add_u32 s{sA3}, s{sA3}, s{t0}
    """)
    if f: a.I(f"s_add_u32 s{sA3}, s{sA3}, {32*1024}")

FX = 24; FB = 28; FRG = 16
def final_loads(a):
    a.mk_srd(SB, sB2, 1024)
    a.mk_srd(SO, sOUT, 0x200000)
    a.L(f"""
    s_lshl_b32 s{t0}, s{sG3}, 1
    s_add_u32 s{t0}, s{t0}, s{sMH}
    s_lshl_b32 s{t0}, s{t0}, 3
    s_add_u32 s{t0}, s{t0}, s{sWV}
    s_lshl_b32 s{t0}, s{t0}, 3
    v_lshrrev_b32 v22, 3, v{vLane}
    v_add_u32 v22, s{t0}, v22
    v_and_b32 v23, 7, v{vLane}
    v_lshlrev_b32 v23, 4, v23
    s_lshl_b32 s{t1}, s{sNT3}, 7
    v_add_u32 v23, s{t1}, v23
    v_lshl_add_u32 v18, v22, 10, v23
    v_lshlrev_b32 v22, 3, v22
    s_mov_b32 s{t0}, {RG}
    """)
    a.I(f"buffer_load_dwordx4 {vr(FX,4)}, v18, {srd(SX)}, 0 offen", "fin")
    a.I(f"buffer_load_dwordx4 {vr(FB,4)}, v23, {srd(SB)}, 0 offen", "fin")
    a.I(f"buffer_load_dwordx2 {vr(FRG,2)}, v22, {srd(SWS)}, s{t0} offen sc1", "fin")

def a_load(a, slot, ksoff, tag):
    r = P_A + 8 * slot
    a.I(f"s_add_u32 s{t0}, s{sA3}, {ksoff*1024}")
    a.I(f"buffer_load_dwordx4 {vr(r,4)}, v{vL16}, {srd(SWS)}, s{t0} offen sc1", tag)
    a.I(f"buffer_load_dwordx4 {vr(r+4,4)}, v{vA3o}, {srd(SWS)}, s{t0} offen sc1", tag)

def mfma4(a, b, ar):
    for mt in range(2):
        for nt in range(2):
            c = P_ACC + 16 * (2 * mt + nt)
            a.I(f"v_mfma_f32_32x32x16_bf16 {vr(c,16)}, {vr(b+4*nt,4)}, {vr(ar+4*mt,4)}, {vr(c,16)}")

def write_partial(a, f):
    if f:
        a.L(f"""
        v_add_u32 v22, s{sRing}, v{vL16}
        v_add_u32 v23, {65536 - FR - 12*1024}, v22
        """)
    else:
        a.I(f"v_add_u32 v22, s{sRing}, v{vL16}")
    for q in range(16):
        src = 23 if (f and q >= 12) else 22
        a.I(f"v_xor_b32 v{TMP + (q & 3)}, {(q & 7) << 5}, v{src}")
        a.I(f"ds_write_b128 v{TMP + (q & 3)}, {vr(P_ACC + 4*q, 4)} offset:{q*1024}", "pw")

def phase3_f(a):
    order = f_order()
    p3_addr(a, True)
    for r in range(P_ACC, P_ACC + 64): a.I(f"v_mov_b32 v{r}, 0")
    poll_check(a, "pollA", 0xAA, 1)
    for j in range(NA): a_load(a, j, order[j], f"A{j}")
    poll_issue(a, "pollB")
    final_loads(a)
    def trd(j):
        b = P_B + 8 * (j & 1); o = (j % NB) * 2048
        for nt in range(2):
            a.I(f"ds_read_b64_tr_b16 {vr(b+4*nt,2)}, v{vB3a+nt} offset:{o}", f"b{j}")
            a.I(f"ds_read_b64_tr_b16 {vr(b+4*nt+2,2)}, v{vB3a+nt} offset:{o+1024}", f"b{j}")
    a.wait(vm="B0"); trd(0)
    for j in range(28):
        if j + 1 < 28:
            a.wait(vm=f"B{j+1}"); trd(j + 1)
        a.wait(vm=f"A{j}", lg=f"b{j}")
        if j == 0: publish_flag(a, 2)
        mfma4(a, P_B + 8 * (j & 1), P_A + 8 * (j % NA))
        if j + NB < 28: f_bdma(a, j + NB, order)
        if j == 0: poll_check(a, "pollB", 0x55, 1)
        if j == 10: poll_issue(a, "pollC")
        if j == 12: poll_check(a, "pollC", 0xFF, 2)
        if j == 6: a.I("s_barrier")
        if j + NA < 28: a_load(a, j % NA, order[j + NA], f"A{j+NA}")
    a.stamp(3)
    write_partial(a, True)

def phase3_s(a):
    p3_addr(a, False)
    poll_setup(a, False)
    a.wait(vm="all")
    publish_flag(a, 2)
    a.I("s_barrier")
    final_loads(a)
    for r in range(P_ACC, P_ACC + 64): a.I(f"v_mov_b32 v{r}, 0")
    for j in range(8):
        b = P_B + 8 * j; o = (j >> 1) * 4096 + (j & 1) * 512
        for nt in range(2):
            a.I(f"ds_read_b64_tr_b16 {vr(b+4*nt,2)}, v{vB3a+nt} offset:{o}", f"b{j}")
            a.I(f"ds_read_b64_tr_b16 {vr(b+4*nt+2,2)}, v{vB3a+nt} offset:{o+1024}", f"b{j}")
        if j % 2 == 1: a.wait(lg=f"b{j-1}")
    poll_issue(a, "pollO")
    poll_check(a, "pollO", 0xFF, 2)
    for j in range(8): a_load(a, j, j, f"A{j}")
    a.wait(lg="all")
    for j in range(8):
        a.wait(vm=f"A{j}")
        mfma4(a, P_B + 8 * j, P_A + 8 * j)
    a.stamp(3)
    write_partial(a, False)

def final(a):
    a.wait(lg="all")
    a.I("s_barrier")
    a.L(f"""
    v_and_b32 v126, 7, v{vLane}
    v_lshrrev_b32 v127, 3, v{vLane}
    s_and_b32 s{t0}, s{sWV}, 3
    s_lshl_b32 s{t0}, s{t0}, 3
    v_add_u32 v127, s{t0}, v127
    v_lshlrev_b32 v2, 1, v126
    v_xor_b32 v127, v127, v2
    v_lshlrev_b32 v127, 4, v127
    s_lshr_b32 s{t1}, s{sWV}, 2
    s_lshl_b32 s{t1}, s{t1}, 3
    v_add_u32 v126, s{t1}, v126
    v_lshl_add_u32 v2, v126, 10, v127
    v_add_u32 v3, {FR}, v2
    v_add_u32 v4, {65536 - 12*1024}, v2
    v_cmp_le_u32 vcc, 12, v126
    v_cndmask_b32 v3, v3, v4, vcc
    """)
    for i in range(4):
        a.I(f"ds_read_b128 {vr(128+8*i,4)}, v3 offset:{FRS*i}", f"f{i}")
        a.I(f"ds_read_b128 {vr(132+8*i,4)}, v3 offset:{FRS*i+512}", f"f{i}")
    for i in range(4):
        a.I(f"ds_read_b128 {vr(160+8*i,4)}, v2 offset:{16384*i}", f"s{i}")
        a.I(f"ds_read_b128 {vr(164+8*i,4)}, v2 offset:{16384*i+512}", f"s{i}")
    a.wait(vm="fin")
    a.L(f"""
    v_and_b32 v{FRG}, 0xffff0000, v{FRG}
    v_rcp_f32 v{FRG}, v{FRG}
    """)
    for i in range(4):
        a.I(f"v_lshlrev_b32 v{64+2*i}, 16, v{FB+i}")
        a.I(f"v_and_b32 v{65+2*i}, 0xffff0000, v{FB+i}")
        a.I(f"v_lshlrev_b32 v{72+2*i}, 16, v{FX+i}")
        a.I(f"v_and_b32 v{73+2*i}, 0xffff0000, v{FX+i}")
    a.I(f"v_mul_f32 v{FRG}, v{FRG}, v{FRG}")
    a.wait(lg="f1")
    for e in range(8): a.I(f"v_add_f32 v{128+e}, v{128+e}, v{136+e}")
    a.wait(lg="f3")
    for e in range(8): a.I(f"v_add_f32 v{144+e}, v{144+e}, v{152+e}")
    for e in range(8): a.I(f"v_add_f32 v{128+e}, v{128+e}, v{144+e}")
    for e in range(8): a.I(f"v_fma_f32 v{128+e}, v{128+e}, v{FRG}, v{64+e}")
    for e in range(8): a.I(f"v_mul_f32 v{136+e}, 0xbfb8aa3b, v{128+e}")
    for e in range(8): a.I(f"v_exp_f32 v{136+e}, v{136+e}")
    a.wait(lg="s1")
    for e in range(8): a.I(f"v_add_f32 v{160+e}, v{160+e}, v{168+e}")
    for e in range(8): a.I(f"v_add_f32 v{136+e}, 1.0, v{136+e}")
    for e in range(8): a.I(f"v_rcp_f32 v{136+e}, v{136+e}")
    a.wait(lg="s3")
    for e in range(8): a.I(f"v_add_f32 v{176+e}, v{176+e}, v{184+e}")
    for e in range(8): a.I(f"v_add_f32 v{160+e}, v{160+e}, v{176+e}")
    for e in range(8): a.I(f"v_mul_f32 v{128+e}, v{128+e}, v{136+e}")
    for e in range(8): a.I(f"v_fma_f32 v{128+e}, v{128+e}, v{160+e}, v{72+e}")
    for q in range(4): a.I(f"v_cvt_pk_bf16_f32 v{144+q}, v{128+2*q}, v{129+2*q}")
    a.I(f"buffer_store_dwordx4 {vr(144,4)}, v18, {srd(SO)}, 0 offen", "out")
    a.stamp(4)
    if a.stamps:
        a.L(f"""
        s_waitcnt lgkmcnt(0)
        s_lshl_b32 s{t0}, s2, 3
        s_add_u32 s{t0}, s{t0}, s{sWV}
        s_mul_i32 s{t0}, s{t0}, 40
        s_add_u32 s{t0}, s{t0}, {STAMP_OFF}
        s_add_u32 s{t2}, s{sWSp}, s{t0}
        s_addc_u32 s{t3}, s{sWSp+1}, 0
        s_mov_b64 exec, 1
        v_mov_b32 v2, 0
        """)
        for i in range(5):
            a.L(f"v_mov_b32 v4, s{STAMP0+2*i}\nv_mov_b32 v5, s{STAMP0+2*i+1}\nglobal_store_dwordx2 v2, v[4:5], s[{t2}:{t3}] offset:{8*i}\ns_nop 1")

QP = 48
def epi_kv(a, base):
    for t in range(2):
        for r in range(16): a.I(f"v_mul_f32 v{ACC+16*t+r}, v{ACC+16*t+r}, v{vR}")
        for q in range(8): a.I(f"v_cvt_pk_bf16_f32 v{T2+8*t+q}, v{ACC+16*t+2*q}, v{ACC+16*t+2*q+1}")
    a.L(f"""
    v_and_b32 v56, 31, v{vLane}
    s_lshl_b32 s{t0}, s{sMI}, 5
    s_add_u32 s{t0}, s{t0}, 16
    v_add_u32 v56, s{t0}, v56
    v_mul_u32_u24 v56, {KVROW}, v56
    v_lshrrev_b32 v57, 5, v{vLane}
    v_lshl_add_u32 v56, v57, 5, v56
    v_add_u32 v56, {base}, v56
    """)
    for t in range(2):
        a.I(f"ds_write_b128 v56, {vr(T2+8*t,4)} offset:{64*t}", "kvw")
        a.I(f"ds_write_b128 v56, {vr(T2+8*t+4,4)} offset:{64*t+16}", "kvw")

def halo_store(a, kv):
    a.L(f"""
    s_lshl_b32 s{t0}, s{sG}, 3
    s_add_u32 s{t0}, s{t0}, s{sJ}
    s_lshl_b32 s{t0}, s{t0}, 12
    s_add_u32 s{t0}, s{t0}, {HK + kv*2048}
    v_and_b32 v56, 15, v{vLane}
    v_lshlrev_b32 v56, 6, v56
    v_lshrrev_b32 v57, 5, v{vLane}
    v_lshl_add_u32 v56, v57, 5, v56
    s_mov_b32 exec_lo, 0xffff0000
    s_mov_b32 exec_hi, 0xffff0000
    """)
    for t in range(2):
        a.I(f"buffer_store_dwordx4 {vr(T2+8*t,4)}, v56, {srd(SWS)}, s{t0} offen offset:{1024*t} sc1", "hst")
        a.I(f"buffer_store_dwordx4 {vr(T2+8*t+4,4)}, v56, {srd(SWS)}, s{t0} offen offset:{1024*t+16} sc1", "hst")
    a.I("s_mov_b64 exec, -1")

def halo_flag(a, kv):
    a.L(f"""
    s_lshl_b32 s{t0}, s{sG}, 3
    s_add_u32 s{t0}, s{t0}, s{sJ}
    s_lshl_b32 s{t0}, s{t0}, 7
    s_add_u32 s{t0}, s{t0}, {HF + kv*4}
    v_mov_b32 v56, s{sT}
    v_mov_b32 v57, 0
    s_mov_b64 exec, 1
    """)
    a.I(f"buffer_store_dword v56, v57, {srd(SWS)}, s{t0} offen sc1", "hfl")
    a.I("s_mov_b64 exec, -1")

def epi_q(a):
    for r in range(16): a.I(f"v_mul_f32 v{ACCB+r}, v{ACCB+r}, v{vR}")
    for q in range(8): a.I(f"v_cvt_pk_bf16_f32 v{QP+q}, v{ACCB+2*q}, v{ACCB+2*q+1}")

def halo_fetch(a):
    skip = a.newlabel("L_hskip"); zero = a.newlabel("L_hzero"); wr = a.newlabel("L_hwr"); spin = a.newlabel("L_hspin"); got = a.newlabel("L_hgot")
    a.L(f"""
    s_cmp_lg_u32 s{sMI}, 0
    s_cbranch_scc1 {skip}
    """)
    st = a.state()
    for r in range(128, 136): a.I(f"v_mov_b32 v{r}, 0")
    a.L(f"""
    s_cmp_eq_u32 s{sG}, 0
    s_cbranch_scc1 {wr}
    s_sub_u32 s{t2}, s{sG}, 1
    s_lshl_b32 s{t2}, s{t2}, 3
    s_add_u32 s{t2}, s{t2}, s{sJ}
    s_lshl_b32 s{t3}, s{t2}, 7
    s_add_u32 s{t3}, s{t3}, {HF}
    v_mov_b32 v57, 0
    s_mov_b32 s{t5}, 0
    """)
    a.label(spin)
    a.L(f"""
    buffer_load_dwordx2 v[58:59], v57, {srd(SWS)}, s{t3} offen sc1
    s_waitcnt vmcnt(0)
    v_xor_b32 v58, s{sT}, v58
    v_xor_b32 v59, s{sT}, v59
    v_or_b32 v58, v58, v59
    v_cmp_ne_u32 vcc, 0, v58
    s_cbranch_vccz {got}
    s_sleep 1
    s_add_u32 s{t5}, s{t5}, 1
    s_cmp_lt_u32 s{t5}, 0x20000
    s_cbranch_scc1 {spin}
    """)
    a.label(got)
    a.L(f"""
    s_lshl_b32 s{t2}, s{t2}, 12
    s_lshl_b32 s{t3}, s{sH}, 10
    s_add_u32 s{t2}, s{t2}, s{t3}
    s_add_u32 s{t2}, s{t2}, {HK}
    buffer_load_dwordx4 v[128:131], v{vL16}, {srd(SWS)}, s{t2} offen sc1
    buffer_load_dwordx4 v[132:135], v{vL16}, {srd(SWS)}, s{t2} offen offset:2048 sc1
    s_waitcnt vmcnt(0)
    """)
    a.label(wr)
    a.L(f"""
    v_lshrrev_b32 v56, 2, v{vLane}
    v_mul_u32_u24 v56, {KVROW}, v56
    v_and_b32 v57, 3, v{vLane}
    v_lshl_add_u32 v56, v57, 4, v56
    s_lshl_b32 s{t0}, s{sH}, 6
    s_add_u32 s{t0}, s{t0}, {KB}
    v_add_u32 v56, s{t0}, v56
    ds_write_b128 v56, v[128:131]
    ds_write_b128 v56, v[132:135] offset:{VB-KB}
    s_waitcnt lgkmcnt(0)
    """)
    a.restore(st)
    a.label(skip)

def attention(a):
    KR = 128
    LA = 64; LB = 72; PL = 80; PH = 88; O = 96
    a.L(f"""
    v_and_b32 v56, 31, v{vLane}
    s_lshl_b32 s{t0}, s{sMI}, 5
    s_add_u32 s{t0}, s{t0}, 2
    v_add_u32 v58, s{t0}, v56
    v_mul_u32_u24 v58, {KVROW}, v58
    v_lshrrev_b32 v57, 5, v{vLane}
    s_lshl_b32 s{t0}, s{sH}, 6
    s_add_u32 s{t0}, s{t0}, {KB}
    v_add_u32 v58, s{t0}, v58
    v_lshl_add_u32 v59, v57, 4, v58
    v_add_u32 v59, {VB-KB}, v59
    v_lshl_add_u32 v58, v57, 5, v58
    """)
    for w in range(8):
        o = (7 - w) * 2 * KVROW
        a.I(f"ds_read_b128 {vr(KR+8*w,4)}, v58 offset:{o}", f"k{w}")
        a.I(f"ds_read_b128 {vr(KR+8*w+4,4)}, v58 offset:{o+16}", f"k{w}")
        if w >= 5: pass
    def vread(w):
        o = (7 - w) * 2 * KVROW
        a.I(f"ds_read_b128 {vr(192+8*w,4)}, v59 offset:{o}", f"v{w}")
        a.I(f"ds_read_b128 {vr(192+8*w+4,4)}, v59 offset:{o+32}", f"v{w}")
    for w in range(8):
        a.wait(lg=f"k{w}")
        for i in range(4):
            a.I(f"v_dot2_f32_bf16 v{LA+w}, v{QP+i}, v{KR+8*w+i}, {'0' if i == 0 else 'v%d' % (LA+w)}")
            a.I(f"v_dot2_f32_bf16 v{LB+w}, v{QP+4+i}, v{KR+8*w+4+i}, {'0' if i == 0 else 'v%d' % (LB+w)}")
        vread(w)
    for w in range(8): a.I(f"v_permlane32_swap_b32 v{LA+w}, v{LB+w}")
    for w in range(8): a.I(f"v_add_f32 v{LA+w}, v{LA+w}, v{LB+w}")
    nom = a.newlabel("L_nomask")
    a.L(f"""
    s_or_b32 s{t0}, s{sG}, s{sMI}
    s_cmp_lg_u32 s{t0}, 0
    s_cbranch_scc1 {nom}
    v_mov_b32 v57, 0xff800000
    """)
    for w in range(1, 8):
        a.I(f"v_cmp_gt_u32 vcc, {2*w}, v56")
        a.I(f"v_cndmask_b32 v{LA+w}, v{LA+w}, v57, vcc")
    a.label(nom)
    a.fence(2)
    a.L(f"""
    v_max3_f32 v57, v{LA}, v{LA+1}, v{LA+2}
    v_max3_f32 v58, v{LA+3}, v{LA+4}, v{LA+5}
    v_max3_f32 v57, v57, v{LA+6}, v{LA+7}
    v_max_f32 v57, v57, v58
    s_mov_b32 s{t0}, 0x3eb8aa3b
    """)
    for w in range(8): a.I(f"v_sub_f32 v{LA+w}, v{LA+w}, v57")
    for w in range(8): a.I(f"v_mul_f32 v{LA+w}, s{t0}, v{LA+w}")
    for w in range(8): a.I(f"v_exp_f32 v{LA+w}, v{LA+w}")
    a.L(f"""
    v_add_f32 v57, v{LA}, v{LA+1}
    v_add_f32 v58, v{LA+2}, v{LA+3}
    v_add_f32 v59, v{LA+4}, v{LA+5}
    v_add_f32 v56, v{LA+6}, v{LA+7}
    v_add_f32 v57, v57, v58
    v_add_f32 v59, v59, v56
    v_add_f32 v57, v57, v59
    v_rcp_f32 v57, v57
    """)
    for w in range(8): a.I(f"v_mul_f32 v{LA+w}, v{LA+w}, v57")
    for w in range(8): a.I(f"v_cvt_pk_bf16_f32 v{PL+w}, v{LA+w}, 0")
    for w in range(8): a.I(f"v_lshlrev_b32 v{PH+w}, 16, v{PL+w}")
    for w in range(8):
        a.wait(lg=f"v{w}")
        for i in range(8):
            a.I(f"v_dot2_f32_bf16 v{O+2*i}, v{192+8*w+i}, v{PL+w}, {'0' if w == 0 else 'v%d' % (O+2*i)}")
            a.I(f"v_dot2_f32_bf16 v{O+2*i+1}, v{192+8*w+i}, v{PH+w}, {'0' if w == 0 else 'v%d' % (O+2*i+1)}")
    for q in range(8): a.I(f"v_cvt_pk_bf16_f32 v{T2+q}, v{O+2*q}, v{O+2*q+1}")

def o_store(a):
    a.L(f"""
    s_lshl_b32 s{t0}, s{sJ}, 2
    s_lshl_b32 s{t1}, s{sH}, 1
    s_add_u32 s{t0}, s{t0}, s{t1}
    s_lshl_b32 s{t0}, s{t0}, 10
    s_add_u32 s{t0}, s{t0}, s{sAct}
    """)
    a.I(f"buffer_store_dwordx4 {vr(T2,4)}, v{vL16}, {srd(SWS)}, s{t0} offen sc1", "own")
    a.I(f"buffer_store_dwordx4 {vr(T2+4,4)}, v{vL16}, {srd(SWS)}, s{t0} offen offset:1024 sc1", "own")

def build(stamps=False):
    a = K(stamps)
    a.raw(f"; @launch grid=(256,1,1) block=(512,1,1) lds={LDS_BYTES}")
    a.raw('.amdgcn_target "amdgcn-amd-amdhsa--gfx950"\n.text')
    a.raw(f".globl {KN}\n.p2align 8\n.type {KN},@function\n{KN}:")
    prologue(a)
    prep(a)
    a.L(f"s_cmp_ge_u32 s{sJ}, 8\ns_cbranch_scc0 L_qkv")
    st0 = a.state()
    passA(a, True)
    a.L(f"s_cmp_eq_u32 s{sH}, 0\ns_cbranch_scc0 L_ffn_h1")
    st1 = a.state()
    call(a, "L_tileP")
    epi_h(a, ACC, sKsA, 0, "p1", TMP)
    epi_h(a, ACC + 16, sKsA, 2, "p1", T2)
    epi_h(a, ACCB, sKsP, 0, "p1", T2 + 8)
    a.wait(vm="wb3")
    a.I("s_barrier")
    s_early(a)
    a.L(f"""
    v_lshrrev_b32 v126, 5, v{vLane}
    v_bfe_u32 v127, v{vLane}, 2, 2
    v_lshl_add_u32 v126, v126, 3, v127
    v_lshlrev_b32 v126, 6, v126
    v_bfe_u32 v127, v{vLane}, 4, 1
    v_lshl_add_u32 v126, v127, 5, v126
    v_and_b32 v127, 3, v{vLane}
    v_lshl_add_u32 v126, v127, 3, v126
    v_add_u32 v{vPa}, 0x10000, v126
    """)
    def mid():
        a.wait(vm="p1"); publish_flag(a, 1)
    tile_body(a, 1024, 256, vAug3, mid)
    epi_h(a, ACCB, sKsS, 0, "own", TMP)
    a.I("s_branch L_p3s")
    stS = a.state()
    a.restore(st1)
    a.label("L_ffn_h1")
    f_early(a)
    epi_h(a, ACC, sKsA, 4, "p1", TMP)
    epi_h(a, ACC + 16, sKsA, 6, "p1", T2)
    call(a, "L_tileP")
    a.wait(vm=["p1", "wb3"])
    publish_flag(a, 1)
    a.I("s_barrier")
    poll_setup(a, True)
    poll_issue(a, "pollA")
    epi_h(a, ACCB, sKsP, 2, "own", TMP)
    a.I("s_branch L_p3f")
    stF = a.state()
    a.restore(st0)
    a.label("L_qkv")
    passA(a, False)
    a.L(f"s_cmp_eq_u32 s{sH}, 0\ns_cbranch_scc0 L_qkv_h1")
    st1 = a.state()
    a.L(f"s_cmp_eq_u32 s{sMI}, 3\ns_cbranch_scc1 L_qkv_h0_m3")
    st2 = a.state()
    call(a, "L_tileP")
    epi_kv(a, KB)
    a.I("s_branch L_qkv_h0_join")
    a.restore(st2)
    a.label("L_qkv_h0_m3")
    a.fence(10)
    epi_kv(a, KB)
    halo_store(a, 0)
    call(a, "L_tileP")
    a.wait(vm="hst")
    halo_flag(a, 0)
    a.label("L_qkv_h0_join")
    a.vq = []
    a.fence(10)
    epi_q(a)
    a.wait(lg="all")
    a.I("s_barrier")
    s_early(a)
    halo_fetch(a)
    attention(a)
    o_store(a)
    a.I("s_branch L_p3s")
    a.restore(st1)
    a.label("L_qkv_h1")
    f_early(a)
    epi_kv(a, VB)
    l3 = a.newlabel("L_m3"); lj = a.newlabel("L_m3j")
    a.L(f"s_cmp_eq_u32 s{sMI}, 3\ns_cbranch_scc0 {l3}")
    st2 = a.state()
    halo_store(a, 1)
    call(a, "L_tileP")
    a.I("s_waitcnt vmcnt(0)")
    halo_flag(a, 1)
    a.I(f"s_branch {lj}")
    a.restore(st2)
    a.label(l3)
    call(a, "L_tileP")
    a.label(lj)
    a.fence(10)
    epi_q(a)
    a.wait(lg="all")
    a.I("s_barrier")
    halo_fetch(a)
    attention(a)
    poll_setup(a, True)
    poll_issue(a, "pollA")
    o_store(a)
    assert a.vq[-3:] == ["pollA", "own", "own"] and stF[0][-3:] == ["pollA", "own", "own"]
    a.label("L_p3f")
    a.vq = ["B%d" % j for j in range(NB) for _ in range(2)] + ["pollA", "own", "own"]
    a.lq = []
    a.fence(2)
    phase3_f(a)
    a.I("s_branch L_final")
    stf = a.state()
    a.label("L_p3s")
    a.vq = ["Wo", "own"]; a.lq = []
    a.fence(2)
    phase3_s(a)
    a.label("L_final")
    a.vq = ["fin"]
    final_fix = True
    final(a)
    a.label("L_end")
    a.I("s_endpgm")
    a.label("L_tileP")
    a.hist = []; a.fence(2)
    vq = a.vq
    tile_body(a, 2048, 512, vAug2)
    a.I(f"s_setpc_b64 s[{sRet}:{sRet+1}]")
    a.raw(".p2align 8\n.rept 64\n  s_nop 0\n.endr\nL_codeend:")
    a.raw(f""".section .rodata,"a"
.p2align 6
.amdhsa_kernel {KN}
  .amdhsa_next_free_vgpr 256
  .amdhsa_next_free_sgpr 102
  .amdhsa_accum_offset 256
  .amdhsa_group_segment_fixed_size 0
  .amdhsa_kernarg_size 88
  .amdhsa_user_sgpr_count 2
  .amdhsa_user_sgpr_kernarg_segment_ptr 1
  .amdhsa_system_sgpr_workgroup_id_x 1
.end_amdhsa_kernel""")
    return "\n".join(a.out) + "\n", a.nins

if __name__ == "__main__":
    ap = argparse.ArgumentParser()
    ap.add_argument("-o", default=f"cdna_kernels/{NAME}.s")
    ap.add_argument("--stamps", action="store_true")
    args = ap.parse_args()
    txt, n = build(args.stamps)
    open(args.o, "w").write(txt)
    print("instructions:", n)
```

```python
import sys, argparse
from asmlib import Asm, parse

NAME = "recurrent_scan__sliding_local_dilated__dense_activation_squared_relu__prompt"
KN = NAME + "_kernel"

ACT = 0x0
RG = 0xA00000
CG = 0xA10000
HK = 0xA40000
HF = 0xAC0000
FL = 0xAD0000
EP = 0xAE0000
WS_SIZE = 0xB00000
STAMP_OFF = 0xF000000
OOB = 0x7FF00000
KB = 65536; KVROW = 144; VB = KB + 144 * KVROW
FR = 110592; FRS = 12288
MISC = 159744
RGL = MISC + 2048
CNT = MISC + 2560
LDS_BYTES = 163840
sS4, sS52, sPw, sMid, sXb = 3, 4, 5, 6, 7
sX, sWQ, sWO, sW1, sB1, sW2, sB2, sOUT, sDBG, sWSp = 8, 10, 12, 16, 18, 20, 22, 24, 26, 28
sTile, sFv = 30, 31
SX, SW, SWS, SC, SO, SB = 32, 36, 40, 44, 48, 52
sWV, sG, sJ, sT, sMI, sH, sS, sXo, sWo_, sM0, sG3, sMH, sNT3, sColA, sColP, sColS, sKsA, sE, sONE, sLO1, sHI1 = range(56, 77)
sAct = 77
sRet = 78
sFlg = 80
sKsP, sKsS = 81, 82
sFa = 83
t0, t1, t2, t3, t4, t5 = 84, 85, 86, 87, 88, 89
STAMP0 = 92
sB3, sA3, sRing = 62, 63, 64

def srd(n): return f"s[{n}:{n+3}]"
def vr(a, n): return f"v[{a}:{a+n-1}]"

vLane = 1
vXo0, vXo1, vWo, vPo, vSo = 2, 3, 4, 5, 6
vB3o = 7
vXa = 8
vWa = 12
vPa = 14
vL16 = 15
vBaug = 16
vR = 20
vAaug = 22
vAug6 = 30
vAug5 = 58
vAug4 = 60
WF = 32
TMP = 48
ACC = 64
ACCB = 96
T2 = 112
XR = 128
P_ACC = 64
NA = 8; NB = 6; NBR = 12
P_B = 128
P_A_f = [224, 232, 240, 248, 32, 40, 48, 8 * 7]
P_A_s = 192
vA3o = 3; vB3a = 4; vPoll = 6; vPolld = 2
FX = 24; FB = 28; FRG = 16; vOo = 18

FBUD = {0: 3, 1: 7}
DMAPAT = {3: 3, 0: 3, 1: 2, 2: 0}
GAT_ISSUE = 14; GAT_FIN = 21
PF1 = False
PF3_AT = []
PRIO_TILE = 2
STMOD = 'sc1'
LDMOD = 'sc1'
PSLEEP = 1
TLBW = 0
NOATOM = False
SDELAY = 0

class K(Asm):
    def __init__(self, stamps=False):
        super().__init__(); self.stamps = stamps; self.fine = True; self.p3delay = 0
    def stamp(self, i):
        if self.stamps:
            self.I(f"s_memrealtime s[{STAMP0}:{STAMP0+1}]")
            if i: self.I(f"s_memtime s[{STAMP0+2}:{STAMP0+3}]")
            self.I("s_waitcnt lgkmcnt(0)")
            self.I(f"v_writelane_b32 v63, s{STAMP0}, {i}")
            if i: self.I(f"v_writelane_b32 v0, s{STAMP0+2}, {i}")
    def dma(self, s, voff, soff, m0base, m0imm, tag, mods=""):
        self.I(f"s_add_u32 m0, s{m0base}, {m0imm}")
        self.I(f"buffer_load_dwordx4 v{voff}, {srd(s)}, s{soff} offen {mods} lds".replace("  ", " "), tag)
    def mk_srd(self, d, p, size):
        self.L(f"s_mov_b32 s{d}, s{p}\ns_mov_b32 s{d+1}, s{p+1}\ns_mov_b32 s{d+2}, {size}\ns_mov_b32 s{d+3}, 0x20000")

class Fill:
    def __init__(self, a): self.a = a; self.q = []
    def add(self, txt, tag=None, atomic=False):
        lines = [t.strip() for t in txt.strip().split("\n") if t.strip()]
        if atomic: self.q.append((len(lines), lambda: [self.a.I(t, tag) for t in lines]))
        else:
            for t in lines: self.q.append((1, (lambda t=t: self.a.I(t, tag))))
    def fn(self, n, f): self.q.append((n, f))
    def pop(self, budget):
        while self.q and budget > 0:
            n, f = self.q.pop(0); f(); budget -= n
    def flush(self): self.pop(1 << 30)

def stage0_dma(a, tag):
    a.dma(SW, vWo, sWo_, sM0, 2048, tag)
    a.dma(SX, vXo0, sXo, sM0, 0, tag)
    a.I(f"s_add_u32 s{sWo_}, s{sWo_}, s{sS4}")
    a.dma(SW, vWo, sWo_, sM0, 3072, tag)
    a.dma(SX, vXo1, sXo, sM0, 1024, tag)

def stage_parts(a, st, tag):
    sl = (st % 4) * 32768
    def w(off, last):
        def f():
            a.dma(SW, vWo, sWo_, sM0, sl + off, tag)
            a.I(f"s_add_u32 s{sWo_}, s{sWo_}, s{sS52 if last else sS4}")
        return f
    def x(v, so, off, adv):
        def f():
            a.dma(SX, v, so, sM0, sl + off, tag)
            if adv: a.I(f"s_add_u32 s{so}, s{so}, 128")
        return f
    return [w(2048, 0), x(vXo0, sXo, 0, 0), w(3072, 0), x(vXo1, sXo, 1024, 1),
            w(4096 + 2048, 0), x(vXo0, sXb, 4096, 0), w(4096 + 3072, 1), x(vXo1, sXb, 4096 + 1024, 1)]

def prologue(a):
    a.L(f"""
    s_cmp_ge_u32 s2, 256
    s_cbranch_scc1 L_end
    s_load_dwordx16 s[8:23], s[0:1], 0
    s_load_dwordx4 s[24:27], s[0:1], 64
    s_load_dwordx2 s[28:29], s[0:1], 80
    s_getpc_b64 s[{t0}:{t1}]
    """)
    a.label("L_cpf")
    if a.stamps: a.I("v_mov_b32 v63, 0")
    a.stamp(0)
    a.L(f"""
    v_lshrrev_b32 v7, 6, v0
    s_and_b32 s{t2}, s2, 0xf8
    v_add_u32 v12, s{t2}, v7
    v_and_b32 v11, 1, v0
    v_lshl_add_u32 v12, v12, 1, v11
    v_lshlrev_b32 v12, 7, v12
    v_min_u32 v12, L_codeend-L_cpf-4, v12
    """)
    a.I(f"global_load_dword v62, v12, s[{t0}:{t1}]", "cpf")
    a.L(f"""
    v_and_b32 v{vLane}, 63, v0
    s_and_b32 s{t0}, s2, 7
    s_lshr_b32 s{t1}, s2, 3
    v_readfirstlane_b32 s{sWV}, v7
    s_lshl_b32 s{sG}, s{t0}, 1
    s_and_b32 s{sG}, s{sG}, 8
    s_and_b32 s{t2}, s{t1}, 7
    s_add_u32 s{sG}, s{sG}, s{t2}
    s_lshr_b32 s{sJ}, s{t1}, 1
    s_and_b32 s{sJ}, s{sJ}, 12
    s_and_b32 s{t2}, s{t0}, 3
    s_add_u32 s{sJ}, s{sJ}, s{t2}
    s_and_b32 s{sMI}, s{sWV}, 3
    s_lshr_b32 s{sH}, s{sWV}, 2
    """)
    if TLBW:
        offs = [16, 48, 64, 40, 56, 72, 80, 80]; cnts = [0, 1, 1, 0, 0, 0, 5, 10]
        co = sum(o << (8 * i) for i, o in enumerate(offs)); cc = sum(o << (4 * i) for i, o in enumerate(cnts))
        a.L(f"""
        s_mov_b32 s{sRet}, {co & 0xffffffff}
        s_mov_b32 s{sRet+1}, {co >> 32}
        s_lshl_b32 s{t2}, s{sWV}, 3
        s_lshr_b64 s[{sRet}:{sRet+1}], s[{sRet}:{sRet+1}], s{t2}
        s_and_b32 s{t3}, s{sRet}, 0xff
        s_load_dwordx2 s[{sRet}:{sRet+1}], s[0:1], s{t3}
        s_lshr_b32 s{t2}, s{t2}, 1
        s_lshr_b32 s{t2}, {cc}, s{t2}
        s_and_b32 s{t2}, s{t2}, 15
        v_min_u32 v61, s{t2}, v{vLane}
        v_lshlrev_b32 v61, 20, v61
        """)
    a.L(f"""
    v_lshrrev_b32 v9, 4, v{vLane}
    v_and_b32 v8, 7, v{vLane}
    v_lshrrev_b32 v10, 3, v{vLane}
    v_lshlrev_b32 v{vL16}, 4, v{vLane}
    v_lshrrev_b32 v24, 5, v{vLane}
    s_mul_i32 s{t4}, s{sJ}, 448
    s_and_b32 s{t5}, s{sJ}, 1
    s_lshl_b32 s{t5}, s{t5}, 6
    s_sub_u32 s{t4}, s{t4}, {8*448}
    s_add_u32 s{sColA}, s{t4}, s{t5}
    s_sub_u32 s{t4}, s{t4}, s{t5}
    s_lshl_b32 s{t2}, s{sJ}, 7
    s_add_u32 s{t3}, s{t2}, 1024
    s_cmp_ge_u32 s{sJ}, 8
    s_cselect_b32 s{sColA}, s{sColA}, s{t3}
    s_cselect_b32 s{sS}, 512, 0
    s_cselect_b32 s{sPw}, 7, 10
    s_cselect_b32 s{t4}, s{t4}, s{t2}
    s_add_u32 s{sS}, s{sS}, 3072
    s_lshl_b32 s{SW+2}, s{sS}, 9
    s_mov_b32 s{SX+2}, 0x200000
    s_mov_b32 s{SX+3}, 0x20000
    s_mov_b32 s{SW+3}, 0x20000
    s_mov_b32 s{SC+3}, 0x20000
    """)
    if PF1:
        a.L(f"""
        v_and_b32 v11, 31, v{vLane}
        v_mul_u32_u24 v11, s{sS}, v11
        s_lshl_b32 s{t0}, s{sMI}, 1
        v_add_u32 v13, s{t0}, v24
        v_min_u32 v12, 2, v13
        v_cndmask_b32 v13, v12, v13, vcc
        """.replace("v_cndmask_b32 v13, v12, v13, vcc", f"v_lshlrev_b32 v13, s{sPw}, v13"))
        a.L(f"""
        v_add_u32 v11, v11, v13
        v_lshlrev_b32 v12, 10, v{vLane}
        s_and_b32 s{t0}, s{sG}, 7
        s_lshl_b32 s{t1}, s{sH}, 3
        s_add_u32 s{t0}, s{t0}, s{t1}
        s_lshl_b32 s{t0}, s{t0}, 5
        s_mul_i32 s{t0}, s{t0}, s{sS}
        s_add_u32 s{t0}, s{t0}, s{t4}
        s_lshl_b32 s{t1}, s{sG}, 1
        s_add_u32 s{t1}, s{t1}, s{sMI}
        s_sub_u32 s{t1}, s{t1}, 2
        s_lshl_b32 s{t1}, s{t1}, 16
        s_lshl_b32 s{t2}, s{sH}, 2
        s_lshr_b32 s{t3}, s{sJ}, 2
        s_add_u32 s{t2}, s{t2}, s{t3}
        s_lshl_b32 s{t2}, s{t2}, 7
        s_add_u32 s{t1}, s{t1}, s{t2}
        s_cmp_ge_u32 s{sMI}, 2
        s_cselect_b32 s{sMid}, s{t1}, s{t0}
        s_cselect_b64 vcc, -1, 0
        s_cselect_b32 s{SO+2}, s{SX+2}, s{SW+2}
        s_mov_b32 s{SO+3}, 0x20000
        v_cndmask_b32 v21, v11, v12, vcc
        s_cmp_eq_u32 s{sH}, 0
        s_cselect_b32 s{sXb}, s{sMid}, {OOB}
        s_cselect_b32 s{sMid}, {OOB}, s{sMid}
        """)
    a.L(f"""
    s_lshr_b32 s{t2}, s2, 2
    s_and_b32 s{t3}, s2, 3
    s_cmp_ge_u32 s{t2}, 24
    s_cselect_b32 s{t4}, 512, 0
    s_cselect_b32 s{t5}, 24, 0
    s_add_u32 s{t4}, s{t4}, 3072
    s_sub_u32 s{t5}, s{t2}, s{t5}
    s_lshl_b32 s{t5}, s{t5}, 7
    s_lshl_b32 s{t3}, s{t3}, 3
    s_add_u32 s{t3}, s{t3}, s{sWV}
    s_lshl_b32 s{t3}, s{t3}, 4
    s_mul_i32 s{t3}, s{t3}, s{t4}
    s_add_u32 s{t3}, s{t3}, s{t5}
    v_mul_u32_u24 v13, s{t4}, v10
    v_lshl_add_u32 v13, v8, 4, v13
    s_lshl_b32 s{SC+2}, s{t4}, 9
    s_lshl_b32 s{t4}, s{t4}, 3
    s_add_u32 s{t4}, s{t4}, s{t3}
    s_cmp_ge_u32 s2, 208
    s_cselect_b32 s{SC+2}, 0, s{SC+2}
    s_lshl_b32 s{t5}, s2, 3
    s_add_u32 s{t5}, s{t5}, s{sWV}
    s_lshl_b32 s{t5}, s{t5}, 10
    s_cmp_ge_u32 s{sJ}, 8
    s_waitcnt lgkmcnt(0)
    s_mov_b32 s{SX}, s{sX}
    s_mov_b32 s{SX+1}, s{sX+1}
    s_cselect_b32 s{SW}, s{sW1}, s{sWQ}
    s_cselect_b32 s{SW+1}, s{sW1+1}, s{sWQ+1}
    """)
    if PF1:
        a.L(f"""
        s_cmp_ge_u32 s{sMI}, 2
        s_cselect_b32 s{SO}, s{SX}, s{SW}
        s_cselect_b32 s{SO+1}, s{SX+1}, s{SW+1}
        """)
        a.I(f"buffer_load_dword v120, v21, {srd(SO)}, s{sXb} offen", "pf")
    a.L(f"""
    s_cmp_ge_u32 s{t2}, 24
    s_cselect_b32 s{SC}, s{sW1}, s{sWQ}
    s_cselect_b32 s{SC+1}, s{sW1+1}, s{sWQ+1}
    """)
    a.I(f"buffer_load_dwordx4 v[32:35], v{vL16}, {srd(SX)}, s{t5} offen", "prow")
    a.I(f"buffer_load_dwordx4 v[36:39], v13, {srd(SC)}, s{t3} offen", "pcol")
    a.I(f"buffer_load_dwordx4 v[40:43], v13, {srd(SC)}, s{t4} offen", "pcol")
    a.L(f"""
    s_mov_b32 s{t3}, {EP}
    s_load_dword s{sE}, s[{sWSp}:{sWSp+1}], s{t3}
    v_xor_b32 v11, v8, v9
    v_lshlrev_b32 v11, 4, v11
    v_lshl_add_u32 v{vXo0}, v10, 10, v11
    v_xor_b32 v{vXo1}, 64, v{vXo0}
    v_add_u32 v{vXo1}, 8192, v{vXo1}
    s_lshl_b32 s{sM0}, s{sWV}, 12
    s_lshl_b32 s{sXo}, s{sG}, 3
    s_add_u32 s{sXo}, s{sXo}, s{sWV}
    s_lshl_b32 s{sXo}, s{sXo}, 14
    v_and_b32 v12, 15, v{vLane}
    v_lshlrev_b32 v13, 2, v9
    v_xor_b32 v12, v12, v13
    v_lshrrev_b32 v13, 3, v12
    v_lshlrev_b32 v13, s{sPw}, v13
    v_and_b32 v12, 7, v12
    v_lshl_add_u32 v12, v12, 4, v13
    v_mad_u32_u24 v{vWo}, v9, s{sS}, v12
    s_lshl_b32 s{sS4}, s{sS}, 2
    s_lshl_b32 s{t3}, s{sWV}, 3
    s_mul_i32 s{sWo_}, s{t3}, s{sS}
    s_add_u32 s{sWo_}, s{sWo_}, s{sColA}
    """)
    if TLBW == 2: a.I(f"global_load_dword v60, v61, s[{sRet}:{sRet+1}]", "tlb")
    stage0_dma(a, "st0")
    if TLBW == 1: a.I(f"global_load_dword v60, v61, s[{sRet}:{sRet+1}]", "tlb")
    if PF1:
        a.I(f"buffer_load_dword v121, v21, {srd(SO)}, s{sMid} offen", "pf")
    a.L(f"""
    s_mul_i32 s{sS52}, s{sS}, 52
    s_mov_b32 s{sONE}, 0x3f803f80
    s_mov_b32 s{sLO1}, 0x00003f80
    s_mov_b32 s{sHI1}, 0x3f800000
    v_and_b32 v13, 3, v{vLane}
    v_and_b32 v22, 1, v9
    v_lshlrev_b32 v26, 12, v22
    v_lshlrev_b32 v22, 5, v22
    v_lshl_add_u32 v22, v13, 3, v22
    v_bfe_u32 v23, v{vLane}, 2, 2
    s_lshl_b32 s{t2}, s{sH}, 1
    v_xor_b32 v25, s{t2}, v23
    v_lshlrev_b32 v27, 12, v24
    v_lshl_add_u32 v27, v23, 8, v27
    v_add3_u32 v27, v27, v22, 64
    v_add_u32 v27, {2048-64}, v27
    v_lshl_add_u32 v{vWa}, v25, 6, v27
    v_xor_b32 v{vWa+1}, 64, v{vWa}
    s_lshl_b32 s{sM0}, s{sMI}, 13
    s_sub_u32 s{t3}, 2, s{sH}
    s_lshl_b32 s{sXo}, s{sG}, 2
    s_add_u32 s{sXo}, s{sXo}, s{sMI}
    s_lshl_b32 s{sXo}, s{sXo}, 8
    s_add_u32 s{sXo}, s{sXo}, s{t3}
    s_lshl_b32 s{sXo}, s{sXo}, 7
    s_add_u32 s{sXb}, s{sXo}, 16384
    s_lshl_b32 s{t3}, s{t3}, 2
    s_add_u32 s{t3}, s{t3}, s{sMI}
    s_lshl_b32 s{t3}, s{t3}, 4
    s_mul_i32 s{sWo_}, s{t3}, s{sS}
    s_add_u32 s{sWo_}, s{sWo_}, s{sColA}
    v_and_b32 v46, 1, v9
    v_lshrrev_b32 v47, 1, v9
    v_lshl_add_u32 v46, v46, 1, v47
    v_lshl_add_u32 v46, v8, 3, v46
    s_lshl_b32 s{t2}, s{sWV}, 8
    s_add_u32 s{t2}, s{t2}, {MISC}
    v_lshl_add_u32 v46, v46, 2, s{t2}
    v_and_b32 v27, 15, v{vLane}
    v_lshl_add_u32 v26, v27, 7, v26
    v_add_u32 v26, s{sM0}, v26
    v_bfe_u32 v27, v{vLane}, 1, 3
    v_xor_b32 v27, v27, v24
    v_lshl_add_u32 v{vXa}, v27, 4, v26
    v_xor_b32 v{vXa+1}, 32, v{vXa}
    v_xor_b32 v{vXa+2}, 64, v{vXa}
    v_xor_b32 v{vXa+3}, 96, v{vXa}
    """)

def prep(a):
    a.stamp(1)
    a.wait(vm="prow")
    a.stamp(2)
    a.L(f"""
    v_dot2_f32_bf16 v44, v32, s{sONE}, 0
    v_dot2_f32_bf16 v45, v32, v32, 0
    v_dot2_f32_bf16 v44, v33, s{sONE}, v44
    v_dot2_f32_bf16 v45, v33, v33, v45
    v_dot2_f32_bf16 v44, v34, s{sONE}, v44
    v_dot2_f32_bf16 v45, v34, v34, v45
    v_dot2_f32_bf16 v44, v35, s{sONE}, v44
    v_dot2_f32_bf16 v45, v35, v35, v45
    """)
    a.wait(vm="pcol")
    for i in range(4):
        a.I(f"v_dot2_f32_bf16 v{48+2*i}, v{36+i}, s{sLO1}, 0")
        a.I(f"v_dot2_f32_bf16 v{49+2*i}, v{36+i}, s{sHI1}, 0")
    for i in range(4):
        a.I(f"v_dot2_f32_bf16 v{48+2*i}, v{40+i}, s{sLO1}, v{48+2*i}")
        a.I(f"v_dot2_f32_bf16 v{49+2*i}, v{40+i}, s{sHI1}, v{49+2*i}")
    a.I("v_permlane32_swap_b32 v44, v45")
    for i in range(4):
        a.I(f"v_permlane32_swap_b32 v{48+2*i}, v{49+2*i}")
    a.I("v_add_f32 v56, v44, v45")
    for i in range(4):
        a.I(f"v_add_f32 v{48+2*i}, v{48+2*i}, v{49+2*i}")
    a.I("v_mov_b32 v57, v56")
    a.I("v_permlane16_swap_b32 v48, v50")
    a.I("v_permlane16_swap_b32 v52, v54")
    a.L("""
    v_add_f32 v48, v48, v50
    v_add_f32 v52, v52, v54
    v_permlane16_swap_b32 v56, v57
    v_add_f32_dpp v48, v48, v48 row_ror:8 row_mask:0xf bank_mask:0xf
    v_add_f32_dpp v52, v52, v52 row_ror:8 row_mask:0xf bank_mask:0xf
    v_add_f32 v56, v56, v57
    """)
    a.I("ds_write2_b32 v46, v48, v52 offset0:0 offset1:4", "cs")
    a.L(f"""
    s_waitcnt lgkmcnt(0)
    s_mul_i32 s{sT}, s{sE}, 0x9E3779B1
    s_add_u32 s{sT}, s{sT}, 0x7F4A7C15
    s_and_b32 s{sT}, s{sT}, 0xfffffffc
    """)
    a.lq = []

def prep_tail(a, F, H):
    if H == 1:
        F.add(f"""
        v_lshlrev_b32 v58, 2, v{vLane}
        v_add_u32 v58, {MISC}, v58
        """)
        for w in range(4):
            F.add(f"ds_read2st64_b32 v[{48+2*w}:{49+2*w}], v58 offset0:{2*w} offset1:{2*w+1}", "cs2")
    F.add(f"""
    v_add_f32_dpp v56, v56, v56 row_ror:8 row_mask:0xf bank_mask:0xf
    s_mov_b32 s{SWS}, s{sWSp}
    s_lshl_b32 s{t4}, s2, 3
    v_add_f32_dpp v56, v56, v56 row_ror:4 row_mask:0xf bank_mask:0xf
    s_add_u32 s{t4}, s{t4}, s{sWV}
    s_lshl_b32 s{t4}, s{t4}, 3
    v_add_f32_dpp v56, v56, v56 row_ror:2 row_mask:0xf bank_mask:0xf
    s_mov_b32 s{SWS+1}, s{sWSp+1}
    s_mov_b32 s{SWS+2}, {WS_SIZE}
    v_add_f32_dpp v56, v56, v56 row_ror:1 row_mask:0xf bank_mask:0xf
    s_mov_b32 s{SWS+3}, 0x20000
    v_mov_b32 v112, 0x3b000000
    v_readlane_b32 s{t2}, v56, 0
    v_readlane_b32 s{t3}, v56, 32
    v_mov_b32 v117, s{sT}
    v_mul_f32 v113, s{t2}, v112
    v_mul_f32 v114, s{t3}, v112
    v_fma_f32 v114, -v113, v113, v114
    v_max_f32 v114, 0, v114
    v_cvt_pk_bf16_f32 v115, v113, v114
    v_and_b32 v115, 0xffff0000, v115
    v_add_f32 v115, 0x3727c5ac, v115
    s_add_u32 s{t4}, s{t4}, {RG}
    v_cvt_pk_bf16_f32 v115, v115, v115
    v_and_b32 v115, 0xffff0000, v115
    v_sqrt_f32 v115, v115
    s_lshr_b32 s{t2}, s2, 2
    v_cvt_pk_bf16_f32 v116, v113, v115
    """)
    F.add(f"""
    s_mov_b64 exec, 1
    buffer_store_dwordx2 v[116:117], off, {srd(SWS)}, s{t4} sc1
    s_mov_b64 exec, -1
    """, "pub", atomic=True)
    if H == 0: return
    F.fn(1, lambda: a.wait(lg="cs2"))
    F.add(f"""
    v_add_f32 v48, v48, v49
    v_add_f32 v50, v50, v51
    v_add_f32 v52, v52, v53
    v_add_f32 v54, v54, v55
    v_add_f32 v48, v48, v50
    s_lshl_b32 s{t2}, s{t2}, 9
    v_add_f32 v52, v52, v54
    s_and_b32 s{t3}, s2, 3
    s_mul_i32 s{t3}, s{t3}, {3328*8}
    s_add_u32 s{t2}, s{t2}, s{t3}
    s_add_u32 s{t2}, s{t2}, {CG}
    v_add_f32 v118, v48, v52
    v_mov_b32 v119, s{sT}
    v_lshlrev_b32 v58, 3, v{vLane}
    """)
    F.add(f"""
    s_cmp_eq_u32 s{sMI}, 0
    s_cselect_b32 s{t2}, s{t2}, {OOB}
    s_cmp_ge_u32 s2, 208
    s_cselect_b32 s{t2}, {OOB}, s{t2}
    """, atomic=True)
    F.add(f"buffer_store_dwordx2 v[118:119], v58, {srd(SWS)}, s{t2} offen sc1", "pub")

def prefetch3(a, F, part):
    if part == 0:
        F.add(f"""
        s_mov_b32 s{SC}, s{sW2}
        s_mov_b32 s{SC+1}, s{sW2+1}
        s_mov_b32 s{SC+2}, {1792*1024}
        v_lshlrev_b32 v57, 7, v{vLane}
        s_lshr_b32 s{t2}, s2, 3
        s_mul_i32 s{sPw}, s{t2}, 57344
        s_lshl_b32 s{t3}, s{sMI}, 13
        s_add_u32 s{sPw}, s{sPw}, s{t3}
        """)
        F.add(f"buffer_load_dword v56, v57, {srd(SC)}, s{sPw} offen", "pf")
    elif part == 1:
        F.add(f"s_add_u32 s{sPw}, s{sPw}, 32768")
        F.add(f"buffer_load_dword v55, v57, {srd(SC)}, s{sPw} offen", "pf")

def setup_late(a, F, H, ffn):
    F.add(f"""
    s_and_b32 s{t2}, s2, 7
    s_lshr_b32 s{t3}, s2, 3
    s_lshl_b32 s{sG3}, s{t2}, 1
    s_and_b32 s{t2}, s{t3}, 1
    s_add_u32 s{sG3}, s{sG3}, s{t2}
    s_bfe_u32 s{sMH}, s{t3}, 0x10001
    s_lshr_b32 s{sNT3}, s{t3}, 2
    """)
    if ffn:
        F.add(f"""
        s_add_u32 s{sColP}, s{sColA}, 256
        s_sub_u32 s{t3}, s{sJ}, 8
        s_mul_i32 s{t4}, s{t3}, 448
        s_add_u32 s{t5}, s{t4}, 384
        s_mul_i32 s{t2}, s{t3}, 14
        s_add_u32 s{t2}, s{t2}, 32
        s_add_u32 s{sKsA}, s{t2}, 2
        s_add_u32 s{sKsS}, s{t2}, 12
        """)
        F.add(f"""
        s_bitcmp1_b32 s{sJ}, 0
        s_cselect_b32 s{sColS}, s{t4}, s{t5}
        s_cselect_b32 s{sKsA}, s{sKsA}, s{t2}
        s_cselect_b32 s{sKsS}, s{t2}, s{sKsS}
        """, atomic=True)
        F.add(f"s_add_u32 s{sKsP}, s{sKsA}, 8")
    else:
        F.add(f"s_lshl_b32 s{sColP}, s{sJ}, 7")
    F.add(f"""
    v_bfe_u32 v56, v{vLane}, 4, 1
    v_lshlrev_b32 v56, 2, v56
    v_and_b32 v57, 7, v{vLane}
    v_xor_b32 v56, v57, v56
    v_lshlrev_b32 v56, 4, v56
    v_lshrrev_b32 v57, 3, v{vLane}
    v_lshl_add_u32 v{vB3o}, v57, 10, v56
    """)
    if H == 0:
        F.add(f"v_mad_u32_u24 v{vPo}, v57, s{sS}, v56")
        if ffn: F.add(f"""
        v_lshrrev_b32 v56, 2, v{vLane}
        v_mul_u32_u24 v56, s{sS}, v56
        v_and_b32 v57, 3, v{vLane}
        v_lshl_add_u32 v{vSo}, v57, 4, v56
        """)
        F.add(f"""
        v_lshl_add_u32 v56, v24, 3, v23
        v_lshl_add_u32 v56, v56, 7, v22
        v_lshrrev_b32 v57, 1, v23
        v_lshl_add_u32 v{vPa}, v57, 6, v56
        """)
    F.add(f"""
    s_lshl_b32 s{t2}, s{sG}, 2
    s_add_u32 s{t2}, s{t2}, s{sMI}
    s_mul_i32 s{sAct}, s{t2}, {144*1024}
    s_lshr_b32 s{t2}, s{t2}, 1
    s_lshl_b32 s{t2}, s{t2}, 3
    s_lshr_b32 s{t3}, s{sJ}, 1
    s_add_u32 s{t2}, s{t2}, s{t3}
    s_lshl_b32 s{t2}, s{t2}, 7
    s_and_b32 s{t3}, s{sJ}, 1
    s_lshl_b32 s{t3}, s{t3}, 4
    s_add_u32 s{t2}, s{t2}, s{t3}
    s_and_b32 s{t3}, s{sMI}, 1
    s_lshl_b32 s{t3}, s{t3}, 3
    s_add_u32 s{t2}, s{t2}, s{t3}
    s_add_u32 s{sFlg}, s{t2}, {FL + 4*H}
    """)

GV = 112
def gather_lines():
    L = []
    for kq in range(4):
        L.append(f"s_mov_b32 s{t2}, {CG + kq*3328*8}\nbuffer_load_dwordx2 v[{GV+2*kq}:{GV+2*kq+1}], v124, {srd(SWS)}, s{t2} offen sc1")
    L.append(f"s_mov_b32 s{t2}, {RG}\nbuffer_load_dwordx2 v[{GV+8}:{GV+9}], v125, {srd(SWS)}, s{t2} offen sc1")
    return L

def gather_setup(a, F, ffn):
    F.fn(1, lambda: a.wait(vm="pf"))
    F.add(f"""
    v_lshl_add_u32 v59, v24, 2, s{sMI}
    v_and_b32 v127, 31, v{vLane}
    """)
    if ffn:
        F.add(f"""
        v_lshl_add_u32 v126, v59, 6, s{sColA}
        v_mov_b32 v125, s{sColS}
        v_cmp_le_u32 vcc, 6, v59
        s_mov_b32 s{SO}, s{sB1}
        s_mov_b32 s{SO+1}, s{sB1+1}
        v_cndmask_b32 v126, v126, v125, vcc
        s_mov_b32 s{SO+2}, {1792*2}
        s_mov_b32 s{SO+3}, 0x20000
        v_lshl_add_u32 v126, v127, 1, v126
        v_lshlrev_b32 v124, 2, v126
        v_add_u32 v124, {1536*8}, v124
        """)
        F.add(f"buffer_load_ushort v{GV+10}, v126, {srd(SO)}, 0 offen", "gat")
    else:
        F.add(f"""
        v_lshrrev_b32 v126, 1, v59
        v_add_u32 v126, 1, v126
        v_cmp_gt_u32 vcc, 3, v126
        v_and_b32 v125, 1, v59
        v_lshl_add_u32 v125, v125, 5, v127
        v_cndmask_b32 v126, 0, v126, vcc
        s_lshl_b32 s{t3}, s{sJ}, 6
        v_lshl_add_u32 v126, v126, 9, v125
        v_add_lshl_u32 v124, v126, s{t3}, 3
        v_mov_b32 v{GV+10}, 0
        """)
    F.add(f"""
    s_lshl_b32 s{t4}, s{sG}, 2
    s_add_u32 s{t4}, s{t4}, s{sMI}
    s_lshl_b32 s{t4}, s{t4}, 5
    v_add_lshl_u32 v125, v127, s{t4}, 3
    v_lshlrev_b32 v59, 8, v59
    v_lshl_add_u32 v59, v127, 3, v59
    v_add_u32 v59, {MISC}, v59
    s_lshl_b32 s{t4}, s{sMI}, 7
    s_add_u32 s{t4}, s{t4}, {RGL}
    v_lshl_add_u32 v58, v127, 2, s{t4}
    """)

def baug_lines(p, tmp):
    return f"""
    v_cmp_gt_u32 vcc, 32, v{vLane}
    v_xor_b32 v{p}, 0x8000, v{p}
    v_and_b32 v{tmp}, 0xffff, v{p}
    v_lshl_or_b32 v{tmp}, v{tmp}, 16, v{tmp}
    v_cndmask_b32 v{vBaug}, 0, v{tmp}, vcc
    v_cndmask_b32 v{vBaug+1}, 0, v{p}, vcc
    v_and_b32 v{tmp}, 0xffff0000, v{p}
    v_mov_b32 v{vBaug+2}, 0
    v_mov_b32 v{vBaug+3}, 0
    v_rcp_f32 v{vR}, v{tmp}
    """

def gather_finish(a, F):
    def chk():
        a.wait(vm="gat")
        ok = a.newlabel("L_gok"); spin = a.newlabel("L_gspin")
        def check():
            a.L(f"""
            v_xor_b32 v126, s{sT}, v{GV+1}
            v_xor_b32 v127, s{sT}, v{GV+3}
            v_xor_b32 v123, s{sT}, v{GV+5}
            v_or3_b32 v126, v126, v127, v123
            v_xor_b32 v127, s{sT}, v{GV+7}
            v_xor_b32 v123, s{sT}, v{GV+9}
            v_or3_b32 v126, v126, v127, v123
            v_cmp_ne_u32 vcc, 0, v126
            """)
        check()
        a.I(f"s_cbranch_vccz {ok}")
        st = a.state()
        a.I(f"s_mov_b32 s{t5}, 0")
        a.label(spin)
        a.I("s_sleep 2")
        for l in gather_lines(): a.L(l)
        a.I("s_waitcnt vmcnt(0)")
        check()
        a.L(f"""
        s_cbranch_vccz {ok}
        s_add_u32 s{t5}, s{t5}, 1
        s_cmp_lt_u32 s{t5}, 0x8000
        s_cbranch_scc1 {spin}
        """)
        a.restore(st)
        a.label(ok)
        a.fence(1)
    F.fn(10, chk)
    F.add(f"ds_write_b32 v58, v{GV+8}", "augw")
    F.add(f"""
    v_add_f32 v{GV}, v{GV}, v{GV+2}
    v_add_f32 v{GV+4}, v{GV+4}, v{GV+6}
    v_mov_b32 v126, 0
    v_add_f32 v{GV}, v{GV}, v{GV+4}
    v_mov_b32 v127, {CNT}
    v_cvt_pk_bf16_f32 v{GV+1}, v{GV}, v{GV}
    """)
    F.add(f"ds_write_b32 v127, v126", "augw")
    F.add(f"""
    v_and_b32 v{GV+2}, 0xffff0000, v{GV+1}
    v_sub_f32 v{GV}, v{GV}, v{GV+2}
    v_and_b32 v{GV+1}, 0xffff, v{GV+1}
    v_cvt_pk_bf16_f32 v{GV+2}, v{GV}, v{GV}
    v_and_b32 v{GV+3}, 0xffff0000, v{GV+2}
    v_sub_f32 v{GV}, v{GV}, v{GV+3}
    v_or_b32 v{GV+2}, v{GV+1}, v{GV+3}
    v_cvt_pk_bf16_f32 v{GV+4}, v{GV}, 0
    v_lshl_or_b32 v{GV+3}, v{GV+10}, 16, v{GV+4}
    """)
    F.add(f"ds_write_b64 v59, v[{GV+2}:{GV+3}]", "augw")
    F.add(baug_lines(GV + 8, GV + 9))

def pair_parts(a, p, tag):
    def mk(ii):
        def f():
            if ii == 0:
                a.L(f"""
                s_lshl_b32 s{sPw}, s{sMI}, 6
                s_add_u32 s{sPw}, s{sPw}, {256*p}
                s_mul_i32 s{sPw}, s{sPw}, s{sS}
                s_add_u32 s{sPw}, s{sPw}, s{sColP}
                s_lshl_b32 s{sXb}, s{sS}, 3
                """)
            a.dma(SW, vPo, sPw, sM0, p * 32768 + ii * 1024, tag)
            if ii < 7: a.I(f"s_add_u32 s{sPw}, s{sPw}, s{sXb}")
        return f
    return [mk(i) for i in range(8)]

def single_parts(a, tag):
    def mk(ii):
        def f():
            if ii == 0:
                a.L(f"""
                s_lshl_b32 s{sPw}, s{sMI}, 7
                s_mul_i32 s{sPw}, s{sPw}, s{sS}
                s_add_u32 s{sPw}, s{sPw}, s{sColS}
                s_lshl_b32 s{sXb}, s{sS}, 4
                """)
            a.dma(SW, vSo, sPw, sM0, 65536 + ii * 1024, tag)
            if ii < 7: a.I(f"s_add_u32 s{sPw}, s{sPw}, s{sXb}")
        return f
    return [mk(i) for i in range(8)]

def passA_reads(a, n):
    s, k = divmod(n, 4)
    if k == 0 and s in (2, 4, 6):
        for r in (vXa, vXa + 1, vXa + 2, vXa + 3, vWa, vWa + 1):
            a.I(f"v_xor_b32 v{r}, 0x10000, v{r}")
    o = (s & 1) * 32768
    wf = WF + 8 * (n & 1)
    tag = f"r{n}"
    a.I(f"ds_read_b64_tr_b16 {vr(wf,2)}, v{vWa} offset:{o + k*8192}", tag)
    a.I(f"ds_read_b64_tr_b16 {vr(wf+2,2)}, v{vWa} offset:{o + k*8192 + 1024}", tag)
    a.I(f"ds_read_b128 {vr(XR+4*n,4)}, v{vXa+k} offset:{o}", tag)
    a.I(f"ds_read_b64_tr_b16 {vr(wf+4,2)}, v{vWa+1} offset:{o + k*8192}", tag + "b")
    a.I(f"ds_read_b64_tr_b16 {vr(wf+6,2)}, v{vWa+1} offset:{o + k*8192 + 1024}", tag + "b")

def passA(a, ffn, H):
    F = Fill(a)
    for p in stage_parts(a, 2 - H, f"st{2-H}"): p()
    prep_tail(a, F, H); setup_late(a, F, H, ffn)
    if H == 1: gather_setup(a, F, ffn)
    a.stamp(3)
    a.wait(vm="st0")
    a.I("s_barrier")
    a.stamp(4)
    passA_reads(a, 0)
    pend = stage_parts(a, 3, "st3") if H == 0 else []
    for n in range(32):
        s, k = divmod(n, 4)
        wf = WF + 8 * (n & 1)
        c0 = vr(ACC,16) if n else "0"; c1 = vr(ACC+16,16) if n else "0"
        np_ = DMAPAT[k] if (s or k == 3) else (2 if k == 2 else 3)
        a.wait(lg=f"r{n}")
        a.I(f"v_mfma_f32_32x32x16_bf16 {vr(ACC,16)}, {vr(wf,4)}, {vr(XR+4*n,4)}, {c0}")
        if pend and np_: pend.pop(0)(); np_ -= 1
        F.pop(FBUD[H] // 2)
        a.wait(lg=f"r{n}b")
        a.I(f"v_mfma_f32_32x32x16_bf16 {vr(ACC+16,16)}, {vr(wf+4,4)}, {vr(XR+4*n,4)}, {c1}")
        if n < 31: passA_reads(a, n + 1)
        for _ in range(np_):
            if pend: pend.pop(0)()
        F.pop(FBUD[H] - FBUD[H] // 2 + (3 if k == 2 and H == 0 else 0))
        if H == 1:
            if n == GAT_ISSUE:
                F.flush()
                for l in gather_lines(): F.add(l, "gat", atomic=True)
            if n == GAT_FIN: F.flush(); gather_finish(a, F)
            if n in PF3_AT: prefetch3(a, F, PF3_AT.index(n))
        if H == 0 and n == 18: F.flush()
        if a.stamps and a.fine and k == 2: a.stamp(16 + 2 * s)
        if k == 2:
            if s == 7: F.flush(); a.wait(lg="augw")
            if s < 7: a.wait(vm=f"st{s+1}")
            a.I("s_barrier")
            if a.stamps and a.fine: a.stamp(17 + 2 * s)
            assert not pend
            if H == 0:
                if 1 <= s <= 4: pend = stage_parts(a, s + 3, f"st{s+3}")
                if s == 5: pend = pair_parts(a, 0, "wb1")
                if s == 6: pend = pair_parts(a, 1, "wb2")
                if s == 7 and ffn: pend = single_parts(a, "wb3")
            if s == 7:
                a.L(f"""
                v_and_b32 v126, 31, v{vLane}
                v_lshlrev_b32 v127, 3, v126
                v_add_u32 v127, {MISC}, v127
                v_mov_b32 v{vAaug+2}, 0
                v_mov_b32 v{vAaug+3}, 0
                v_mov_b32 v{vAaug+6}, 0
                v_mov_b32 v{vAaug+7}, 0
                """)
                if H == 0:
                    a.L(f"""
                    s_lshl_b32 s{t0}, s{sMI}, 7
                    s_add_u32 s{t0}, s{t0}, {RGL}
                    v_lshl_add_u32 v126, v126, 2, s{t0}
                    """)
                    a.I(f"ds_read_b32 v125, v126", "augp")
                a.I(f"ds_read_b64 {vr(vAaug,2)}, v127 offset:{512*H}", "augr")
                a.I(f"ds_read_b64 {vr(vAaug+4,2)}, v127 offset:{512*H+256}", "augr")
                if H == 0:
                    a.I(f"ds_read_b64 {vr(vAug4,2)}, v127 offset:1024", "augr")
                    a.I(f"ds_read_b64 {vr(vAug5 if ffn else vAug6,2)}, v127 offset:1280", "augr")
                    if ffn: a.I(f"ds_read_b64 {vr(vAug6,2)}, v127 offset:1536", "augr")
    if H == 0:
        a.wait(lg="augp")
        a.L(baug_lines(125, 126))
    a.wait(lg="augr")
    a.I(f"v_mfma_f32_32x32x16_bf16 {vr(ACC,16)}, {vr(vAaug,4)}, {vr(vBaug,4)}, {vr(ACC,16)}")
    a.I(f"v_mfma_f32_32x32x16_bf16 {vr(ACC+16,16)}, {vr(vAaug+4,4)}, {vr(vBaug,4)}, {vr(ACC+16,16)}")
    a.wait(vm=["wb1", "pf"])
    a.I("s_barrier")
    a.stamp(6)
    return pend

def tile_body(a, kstr, secoff, hooks):
    a.I(f"s_setprio {PRIO_TILE}")
    def rd(n):
        wf = WF + 4 * (n & 3)
        a.I(f"ds_read_b64_tr_b16 {vr(wf,2)}, v{vPa} offset:{n*kstr}", f"t{n}")
        a.I(f"ds_read_b64_tr_b16 {vr(wf+2,2)}, v{vPa} offset:{n*kstr+secoff}", f"t{n}")
    for n in range(3): rd(n)
    a.I(f"v_mfma_f32_32x32x16_bf16 {vr(ACCB,16)}, {vr(vAaug,4)}, {vr(vBaug,4)}, 0")
    for n in range(32):
        wf = WF + 4 * (n & 3)
        a.wait(lg=f"t{n}")
        a.I(f"v_mfma_f32_32x32x16_bf16 {vr(ACCB,16)}, {vr(wf,4)}, {vr(XR+4*n,4)}, {vr(ACCB,16)}")
        if n in hooks: hooks[n]()
        if n + 3 < 32: rd(n + 3)
    a.I("s_setprio 0")

def set_aug(a, r):
    a.I(f"v_mov_b32 v{vAaug}, v{r}")
    a.I(f"v_mov_b32 v{vAaug+1}, v{r+1}")

def call(a, label, last):
    a.I(f"s_getpc_b64 s[{t0}:{t1}]")
    l = a.newlabel("L_pc")
    a.label(l)
    a.I(f"s_add_u32 s{t0}, s{t0}, {label}-{l}")
    a.I(f"s_addc_u32 s{t1}, s{t1}, 0")
    a.I(f"s_swappc_b64 s[{sRet}:{sRet+1}], s[{t0}:{t1}]")
    a.hist = [parse(x) for x in last]

TILE_LAST = [f"v_mfma_f32_32x32x16_bf16 {vr(ACCB,16)}, {vr(WF+12,4)}, {vr(XR+124,4)}, {vr(ACCB,16)}", "s_nop 1"]

def flag_store(a, soff, valexpr):
    a.L(f"""
    v_mov_b32 v62, {valexpr}
    s_mov_b64 exec, 1
    """)
    a.I(f"buffer_store_dword v62, off, {srd(SWS)}, s{soff} sc1", "flag")
    a.I("s_mov_b64 exec, -1")

def publish_flag(a, p):
    a.I(f"s_add_u32 s{t0}, s{sT}, {p}")
    flag_store(a, sFlg, f"s{t0}")

def cnt_add(a, v):
    a.L(f"""
    v_mov_b32 v62, {v}
    v_mov_b32 v21, {CNT}
    s_mov_b64 exec, 1
    """)
    a.I("ds_add_u32 v21, v62", "cnt")
    a.I("s_mov_b64 exec, -1")

def cnt_wait(a, shift):
    ok = a.newlabel("L_cok"); spin = a.newlabel("L_cspin")
    a.I(f"v_mov_b32 v21, {CNT}")
    a.label(spin)
    a.L(f"""
    ds_read_b32 v62, v21
    s_waitcnt lgkmcnt(0)
    v_readfirstlane_b32 s{t0}, v62
    s_bfe_u32 s{t0}, s{t0}, {0x40000 + shift}
    s_cmp_lg_u32 s{t0}, 4
    s_cbranch_scc1 {spin}
    """)
    a.lq = []

def epi_h(a, acc, ksreg, ksadd, tag, tmp, pend=None):
    for r in range(16):
        a.I(f"v_max_f32 v{acc+r}, 0, v{acc+r}")
        if pend and r % 4 == 3: pend.pop(0)()
    for r in range(16):
        a.I(f"v_mul_f32 v{acc+r}, v{acc+r}, v{acc+r}")
        if pend and r % 4 == 3: pend.pop(0)()
    for q in range(8):
        a.I(f"v_cvt_pk_bf16_f32 v{tmp+q}, v{acc+2*q}, v{acc+2*q+1}")
    while pend: pend.pop(0)()
    a.I(f"s_add_u32 s{t0}, s{ksreg}, {ksadd}")
    a.I(f"s_lshl_b32 s{t0}, s{t0}, 10")
    a.I(f"s_add_u32 s{t0}, s{t0}, s{sAct}")
    a.I(f"buffer_store_dwordx4 {vr(tmp,4)}, v{vL16}, {srd(SWS)}, s{t0} offen {STMOD}", tag)
    a.I(f"buffer_store_dwordx4 {vr(tmp+4,4)}, v{vL16}, {srd(SWS)}, s{t0} offen offset:1024 {STMOD}", tag)

def f_order():
    ev = lambda t: [2 * t, 2 * t + 1]
    od = lambda t: [14 + 2 * t, 14 + 2 * t + 1]
    La = ev(0) + ev(1) + ev(2) + ev(3) + od(1) + od(2) + od(3) + od(4)
    Lb = ev(4) + od(5) + ev(5) + od(6)
    Lc = ev(6) + od(0)
    return La + Lb + Lc

def f_bdma_parts(a, j, order):
    off = order[j] * 16384
    def p0():
        a.I(f"s_add_u32 s{t0}, s{sB3}, {off}")
        a.dma(SC, vB3o, t0, sRing, (j % NB) * 2048, f"B{j}")
    def p1():
        a.I(f"s_add_u32 s{t0}, s{sB3}, {off + 8192}")
        a.dma(SC, vB3o, t0, sRing, (j % NB) * 2048 + 1024, f"B{j}")
    return [p0, p1]

def f_early(a):
    order = f_order()
    a.mk_srd(SC, sW2, 1792 * 1024)
    a.L(f"""
    s_mul_i32 s{sB3}, s{sMI}, {28*16384}
    s_lshl_b32 s{t0}, s{sNT3}, 7
    s_add_u32 s{sB3}, s{sB3}, s{t0}
    s_mul_i32 s{sRing}, s{sMI}, {FRS}
    s_add_u32 s{sRing}, s{sRing}, {FR}
    """)
    return [p for j in range(NB) for p in f_bdma_parts(a, j, order)]

sPo = 90
def poll_setup(a, ffn_members):
    a.L(f"""
    s_lshl_b32 s{sPo}, s{sG3}, 1
    s_add_u32 s{sPo}, s{sPo}, s{sMH}
    s_lshl_b32 s{sPo}, s{sPo}, 10
    s_lshl_b32 s{t1}, s{sMI}, 7
    s_add_u32 s{sPo}, s{sPo}, s{t1}
    s_add_u32 s{sPo}, s{sPo}, {FL + (512 if ffn_members else 0)}
    """)

def poll_issue(a, tag=None):
    a.I(f"s_load_dwordx8 s[8:15], s[{sWSp}:{sWSp+1}], s{sPo} glc")

def poll_check(a, tag, mask, thr):
    ok = a.newlabel("L_pok"); spin = a.newlabel("L_pspin")
    a.I(f"s_mov_b32 s{t5}, 0")
    a.I(f"s_add_u32 s{t1}, s{sT}, {thr}")
    a.label(spin)
    a.I("s_waitcnt lgkmcnt(0)")
    a.lq = []
    ws_ = [i for i in range(8) if mask >> i & 1]
    for i in ws_: a.I(f"s_sub_u32 s{8+i}, s{8+i}, s{t1}")
    for i in ws_[1:]: a.I(f"s_max_u32 s{8+ws_[0]}, s{8+ws_[0]}, s{8+i}")
    a.L(f"""
    s_cmp_lt_u32 s{8+ws_[0]}, {4-thr}
    s_cbranch_scc1 {ok}
    s_sleep {PSLEEP}
    """)
    poll_issue(a)
    a.L(f"""
    s_add_u32 s{t5}, s{t5}, 1
    s_cmp_lt_u32 s{t5}, 0x40000
    s_cbranch_scc1 {spin}
    s_waitcnt lgkmcnt(0)
    """)
    a.label(ok)

def p3_addr(a, f):
    a.L(f"""
    v_bfe_u32 v22, v{vLane}, 2, 2
    v_lshrrev_b32 v23, 5, v{vLane}
    v_lshl_add_u32 v23, v23, {2 if f else 4}, v22
    v_lshlrev_b32 v23, 7, v23
    v_lshrrev_b32 v22, 1, v22
    v_lshl_add_u32 v23, v22, 6, v23
    v_bfe_u32 v22, v{vLane}, 4, 1
    v_lshl_add_u32 v23, v22, 5, v23
    v_and_b32 v22, 3, v{vLane}
    v_lshl_add_u32 v23, v22, 3, v23
    v_add_u32 v{vB3a}, s{sRing}, v23
    v_xor_b32 v{vB3a+1}, 64, v{vB3a}
    v_add_u32 v{vA3o}, {144*1024}, v{vL16}
    s_lshl_b32 s{t0}, s{sG3}, 1
    s_add_u32 s{t0}, s{t0}, s{sMH}
    s_mul_i32 s{sA3}, s{t0}, {2*144*1024}
    s_mul_i32 s{t0}, s{sMI}, {(28 if f else 8)*1024}
    s_add_u32 s{sA3}, s{sA3}, s{t0}
    """)
    if f: a.I(f"s_add_u32 s{sA3}, s{sA3}, {32*1024}")

def final_loads(a):
    a.mk_srd(SB, sB2, 1024)
    a.mk_srd(SO, sOUT, 0x200000)
    a.L(f"""
    s_lshl_b32 s{t0}, s{sG3}, 1
    s_add_u32 s{t0}, s{t0}, s{sMH}
    s_lshl_b32 s{t0}, s{t0}, 3
    s_add_u32 s{t0}, s{t0}, s{sWV}
    s_lshl_b32 s{t0}, s{t0}, 3
    v_lshrrev_b32 v22, 3, v{vLane}
    v_add_u32 v22, s{t0}, v22
    v_and_b32 v23, 7, v{vLane}
    v_lshlrev_b32 v23, 4, v23
    s_lshl_b32 s{t1}, s{sNT3}, 7
    v_add_u32 v23, s{t1}, v23
    v_lshl_add_u32 v{vOo}, v22, 10, v23
    v_lshlrev_b32 v22, 3, v22
    s_mov_b32 s{t0}, {RG}
    """)
    a.I(f"buffer_load_dwordx4 {vr(FX,4)}, v{vOo}, {srd(SX)}, 0 offen", "fin")
    a.I(f"buffer_load_dwordx4 {vr(FB,4)}, v23, {srd(SB)}, 0 offen", "fin")
    a.I(f"buffer_load_dwordx2 {vr(FRG,2)}, v22, {srd(SWS)}, s{t0} offen sc1", "fin")

def a_load(a, r, ksoff, tag):
    a.I(f"s_add_u32 s{t0}, s{sA3}, {ksoff*1024}")
    a.I(f"buffer_load_dwordx4 {vr(r,4)}, v{vL16}, {srd(SWS)}, s{t0} offen {LDMOD}", tag)
    a.I(f"buffer_load_dwordx4 {vr(r+4,4)}, v{vA3o}, {srd(SWS)}, s{t0} offen {LDMOD}", tag)

def mfma4(a, b, ar, first=False):
    for mt in range(2):
        for nt in range(2):
            c = P_ACC + 16 * (2 * mt + nt)
            a.I(f"v_mfma_f32_32x32x16_bf16 {vr(c,16)}, {vr(b+4*nt,4)}, {vr(ar+4*mt,4)}, {'0' if first else vr(c,16)}")

def write_partial(a, f):
    a.I(f"v_add_u32 v22, s{sRing}, v{vL16}")
    if f: a.I(f"v_add_u32 v23, {65536 - FR - 12*1024}, v22")
    for q in range(16):
        if f and q == 12: cnt_wait(a, 4)
        src = 23 if (f and q >= 12) else 22
        a.I(f"v_xor_b32 v{8 + (q & 3)}, {(q & 7) << 5}, v{src}")
        a.I(f"ds_write_b128 v{8 + (q & 3)}, {vr(P_ACC + 4*q, 4)} offset:{q*1024}", "pw")

def delay_until(a):
    l = a.newlabel("L_dly")
    a.I(f"v_readlane_b32 s{t2}, v63, 0")
    a.I(f"s_add_u32 s{t2}, s{t2}, {a.p3delay}")
    a.label(l)
    a.L(f"""
    s_sleep 2
    s_memrealtime s[{t0}:{t1}]
    s_waitcnt lgkmcnt(0)
    s_sub_u32 s{t0}, s{t0}, s{t2}
    s_cmp_lt_i32 s{t0}, 0
    s_cbranch_scc1 {l}
    """)

AREG = [224, 232, 240, 248, 32, 40, 48, 0]
def phase3_f(a):
    na = NA
    areg = [224, 232, 240, 248, 32, 40, 48][:na]
    order = f_order()
    a.stamp(9)
    p3_addr(a, True)
    poll_setup(a, True)
    def trd(j):
        b = P_B + 8 * (j % NBR); o = (j % NB) * 2048
        for nt in range(2):
            a.I(f"ds_read_b64_tr_b16 {vr(b+4*nt,2)}, v{vB3a+nt} offset:{o}", f"b{j}")
            a.I(f"ds_read_b64_tr_b16 {vr(b+4*nt+2,2)}, v{vB3a+nt} offset:{o+1024}", f"b{j}")
    for j in range(NBR):
        a.wait(vm=f"B{j}")
        trd(j)
        if j >= 1:
            a.wait(lg=f"b{j-1}")
            for p in f_bdma_parts(a, j - 1 + NB, order): p()
        if j == NB:
            a.wait(vm="own"); flag_store(a, sFa, f"s{sFv}")
        if j == NBR - 2:
            if a.p3delay: delay_until(a)
            poll_issue(a, "pollA")
    a.wait(lg=f"b{NBR-1}")
    for p in f_bdma_parts(a, NBR - 1 + NB, order): p()
    a.stamp(10)
    poll_check(a, "pollA", 0xFF, 1)
    a.stamp(11)
    for j in range(na): a_load(a, areg[j], order[j], f"A{j}")
    final_loads(a)
    nxt = NBR + NB
    for j in range(28):
        a.wait(vm=f"A{j}", lg=f"b{j}")
        if a.fine: a.stamp(32 + j)
        mfma4(a, P_B + 8 * (j % NBR), areg[j % na], j == 0)
        if j >= 1 and j - 1 + NBR < 28 and nxt < 28:
            a.wait(lg=f"b{j-1+NBR}")
            for p in f_bdma_parts(a, nxt, order): p()
            nxt += 1
        if j + NBR < 28:
            a.wait(vm=f"B{j+NBR}")
            trd(j + NBR)
        if j + na == 16 - 2: poll_issue(a, "pollB")
        if j + na == 16: poll_check(a, "pollB", 0x55, 2)
        if j + na == 24 - 2: poll_issue(a, "pollC")
        if j + na == 24:
            a.stamp(12); poll_check(a, "pollC", 0x55, 3); a.stamp(5)
        if j + na < 28: a_load(a, areg[j % na], order[j + na], f"A{j+na}")
    a.stamp(13)
    write_partial(a, True)

def epoch_update(a):
    skip = a.newlabel("L_eskip"); spin = a.newlabel("L_espin"); go = a.newlabel("L_ego")
    a.L(f"""
    s_or_b32 s{t0}, s2, s{sWV}
    s_cbranch_scc1 {skip}
    """)
    st = a.state()
    a.L(f"""
    v_lshlrev_b32 v8, 6, v{vLane}
    s_mov_b32 s{t2}, {RG + 4}
    s_mov_b32 s{t5}, 0
    """)
    a.label(spin)
    a.L(f"""
    buffer_load_dword v9, v8, {srd(SWS)}, s{t2} offen sc1
    v_add_u32 v13, 4096, v8
    buffer_load_dword v10, v13, {srd(SWS)}, s{t2} offen sc1
    v_add_u32 v13, 8192, v8
    buffer_load_dword v11, v13, {srd(SWS)}, s{t2} offen sc1
    v_add_u32 v13, 12288, v8
    buffer_load_dword v12, v13, {srd(SWS)}, s{t2} offen sc1
    s_waitcnt vmcnt(0)
    v_xor_b32 v9, s{sT}, v9
    v_xor_b32 v10, s{sT}, v10
    v_xor_b32 v11, s{sT}, v11
    v_xor_b32 v12, s{sT}, v12
    v_or3_b32 v9, v9, v10, v11
    v_or_b32 v9, v9, v12
    v_cmp_ne_u32 vcc, 0, v9
    s_cbranch_vccz {go}
    s_sleep 8
    s_add_u32 s{t5}, s{t5}, 1
    s_cmp_lt_u32 s{t5}, 0x8000
    s_cbranch_scc1 {spin}
    """)
    a.label(go)
    a.L(f"""
    s_add_u32 s{t0}, s{sE}, 1
    s_mov_b32 s{t2}, {EP}
    """)
    flag_store(a, t2, f"s{t0}")
    a.restore(st)
    a.label(skip)

def phase3_s(a):
    a.stamp(9)
    cnt_add(a, 16)
    a.mk_srd(SC, sWO, 512 * 1024)
    a.L(f"""
    s_lshl_b32 s{sPw}, s{sMI}, 17
    s_lshl_b32 s{t1}, s{sNT3}, 7
    s_add_u32 s{sPw}, s{sPw}, s{t1}
    s_lshl_b32 s{sRing}, s{sMI}, 14
    """)
    cnt_wait(a, 0)
    for j in range(16):
        a.dma(SC, vB3o, sPw, sRing, j * 1024, "Wo")
        if j < 15: a.I(f"s_add_u32 s{sPw}, s{sPw}, 8192")
    p3_addr(a, False)
    poll_setup(a, False)
    a.wait(vm="own")
    a.stamp(10)
    publish_flag(a, 3)
    if a.p3delay: delay_until(a)
    final_loads(a)
    if SDELAY:
        a.p3delay = SDELAY; delay_until(a); a.p3delay = 0
    poll_issue(a, "pollO")
    a.wait(vm="Wo")
    for j in range(8):
        b = P_B + 8 * j; o = (j >> 1) * 4096 + (j & 1) * 512
        for nt in range(2):
            a.I(f"ds_read_b64_tr_b16 {vr(b+4*nt,2)}, v{vB3a+nt} offset:{o}", f"b{j}")
            a.I(f"ds_read_b64_tr_b16 {vr(b+4*nt+2,2)}, v{vB3a+nt} offset:{o+1024}", f"b{j}")
        if j % 2 == 1: a.wait(lg=f"b{j-1}")
    epoch_update(a)
    a.stamp(11)
    poll_check(a, "pollO", 0x55, 3)
    a.stamp(12)
    for j in range(8): a_load(a, P_A_s + 8 * j, j, f"A{j}")
    a.wait(lg="all")
    for j in range(8):
        a.wait(vm=f"A{j}")
        mfma4(a, P_B + 8 * j, P_A_s + 8 * j, j == 0)
    a.stamp(13)
    write_partial(a, False)

def final(a):
    a.wait(lg="all")
    a.I("s_barrier")
    a.stamp(14)
    a.L(f"""
    v_and_b32 v126, 7, v{vLane}
    v_lshrrev_b32 v127, 3, v{vLane}
    s_lshl_b32 s{t0}, s{sMI}, 3
    v_add_u32 v127, s{t0}, v127
    v_lshlrev_b32 v2, 1, v126
    v_xor_b32 v127, v127, v2
    v_lshlrev_b32 v127, 4, v127
    s_lshl_b32 s{t1}, s{sH}, 3
    v_add_u32 v126, s{t1}, v126
    v_lshl_add_u32 v2, v126, 10, v127
    v_add_u32 v3, {FR}, v2
    v_add_u32 v4, {65536 - 12*1024}, v2
    v_cmp_le_u32 vcc, 12, v126
    v_cndmask_b32 v3, v3, v4, vcc
    """)
    for i in range(4):
        a.I(f"ds_read_b128 {vr(128+8*i,4)}, v3 offset:{FRS*i}", f"f{i}")
        a.I(f"ds_read_b128 {vr(132+8*i,4)}, v3 offset:{FRS*i+512}", f"f{i}")
    for i in range(4):
        a.I(f"ds_read_b128 {vr(160+8*i,4)}, v2 offset:{16384*i}", f"s{i}")
        a.I(f"ds_read_b128 {vr(164+8*i,4)}, v2 offset:{16384*i+512}", f"s{i}")
    a.wait(vm="fin")
    a.L(f"""
    v_and_b32 v{FRG}, 0xffff0000, v{FRG}
    v_rcp_f32 v{FRG}, v{FRG}
    """)
    for i in range(4):
        a.I(f"v_lshlrev_b32 v{64+2*i}, 16, v{FB+i}")
        a.I(f"v_and_b32 v{65+2*i}, 0xffff0000, v{FB+i}")
        a.I(f"v_lshlrev_b32 v{72+2*i}, 16, v{FX+i}")
        a.I(f"v_and_b32 v{73+2*i}, 0xffff0000, v{FX+i}")
    a.I(f"v_mul_f32 v{FRG}, v{FRG}, v{FRG}")
    a.wait(lg="f1")
    for e in range(8): a.I(f"v_add_f32 v{128+e}, v{128+e}, v{136+e}")
    a.wait(lg="f3")
    for e in range(8): a.I(f"v_add_f32 v{144+e}, v{144+e}, v{152+e}")
    for e in range(8): a.I(f"v_add_f32 v{128+e}, v{128+e}, v{144+e}")
    for e in range(8): a.I(f"v_fma_f32 v{128+e}, v{128+e}, v{FRG}, v{64+e}")
    for e in range(8): a.I(f"v_mul_f32 v{136+e}, 0xbfb8aa3b, v{128+e}")
    for e in range(8): a.I(f"v_exp_f32 v{136+e}, v{136+e}")
    a.wait(lg="s1")
    for e in range(8): a.I(f"v_add_f32 v{160+e}, v{160+e}, v{168+e}")
    for e in range(8): a.I(f"v_add_f32 v{136+e}, 1.0, v{136+e}")
    for e in range(8): a.I(f"v_rcp_f32 v{136+e}, v{136+e}")
    a.wait(lg="s3")
    for e in range(8): a.I(f"v_add_f32 v{176+e}, v{176+e}, v{184+e}")
    for e in range(8): a.I(f"v_add_f32 v{160+e}, v{160+e}, v{176+e}")
    for e in range(8): a.I(f"v_mul_f32 v{128+e}, v{128+e}, v{136+e}")
    for e in range(8): a.I(f"v_fma_f32 v{128+e}, v{128+e}, v{160+e}, v{72+e}")
    for q in range(4): a.I(f"v_cvt_pk_bf16_f32 v{144+q}, v{128+2*q}, v{129+2*q}")
    a.I(f"buffer_store_dwordx4 {vr(144,4)}, v{vOo}, {srd(SO)}, 0 offen", "out")
    a.stamp(15)
    if a.stamps:
        a.L(f"""
        s_lshl_b32 s{t0}, s2, 3
        s_add_u32 s{t0}, s{t0}, s{sWV}
        s_lshl_b32 s{t0}, s{t0}, 8
        s_add_u32 s{t0}, s{t0}, {STAMP_OFF}
        s_add_u32 s{t2}, s{sWSp}, s{t0}
        s_addc_u32 s{t3}, s{sWSp+1}, 0
        v_lshlrev_b32 v2, 2, v{vLane}
        global_store_dword v2, v63, s[{t2}:{t3}]
        s_add_u32 s{t2}, s{t2}, 0x100000
        s_addc_u32 s{t3}, s{t3}, 0
        global_store_dword v2, v0, s[{t2}:{t3}]
        """)

QP = 48
QP1 = 112
def epi_kv(a, base, pend=None):
    for t in range(2):
        for r in range(16):
            a.I(f"v_mul_f32 v{ACC+16*t+r}, v{ACC+16*t+r}, v{vR}")
            if pend and r % 3 == 2: pend.pop(0)()
        for q in range(8): a.I(f"v_cvt_pk_bf16_f32 v{T2+8*t+q}, v{ACC+16*t+2*q}, v{ACC+16*t+2*q+1}")
    while pend: pend.pop(0)()
    a.L(f"""
    v_and_b32 v56, 31, v{vLane}
    s_lshl_b32 s{t0}, s{sMI}, 5
    s_add_u32 s{t0}, s{t0}, 16
    v_add_u32 v56, s{t0}, v56
    v_mul_u32_u24 v56, {KVROW}, v56
    v_lshrrev_b32 v57, 5, v{vLane}
    v_lshl_add_u32 v56, v57, 5, v56
    v_add_u32 v56, {base}, v56
    """)
    for t in range(2):
        a.I(f"ds_write_b128 v56, {vr(T2+8*t,4)} offset:{64*t}", "kvw")
        a.I(f"ds_write_b128 v56, {vr(T2+8*t+4,4)} offset:{64*t+16}", "kvw")

def halo_store(a, kv, tag):
    a.L(f"""
    s_lshl_b32 s{t1}, s{sG}, 3
    s_add_u32 s{t1}, s{t1}, s{sJ}
    s_lshl_b32 s{t0}, s{t1}, 12
    s_add_u32 s{t0}, s{t0}, {HK + kv*2048}
    s_lshl_b32 s{sFa}, s{t1}, 7
    s_add_u32 s{sFa}, s{sFa}, {HF + kv*4}
    s_mov_b32 s{sFv}, s{sT}
    s_cmp_eq_u32 s{sMI}, 3
    s_cselect_b32 s{t0}, s{t0}, {OOB}
    s_cselect_b32 s{sFa}, s{sFa}, {OOB}
    v_and_b32 v56, 15, v{vLane}
    v_lshlrev_b32 v56, 6, v56
    v_lshl_add_u32 v56, v57, 5, v56
    s_mov_b32 exec_lo, 0xffff0000
    s_mov_b32 exec_hi, 0xffff0000
    """)
    for t in range(2):
        a.I(f"buffer_store_dwordx4 {vr(T2+8*t,4)}, v56, {srd(SWS)}, s{t0} offen offset:{1024*t} sc1", tag)
        a.I(f"buffer_store_dwordx4 {vr(T2+8*t+4,4)}, v56, {srd(SWS)}, s{t0} offen offset:{1024*t+16} sc1", tag)
    a.I("s_mov_b64 exec, -1")

def epi_q(a, dst):
    for r in range(16): a.I(f"v_mul_f32 v{ACCB+r}, v{ACCB+r}, v{vR}")
    for q in range(8): a.I(f"v_cvt_pk_bf16_f32 v{dst+q}, v{ACCB+2*q}, v{ACCB+2*q+1}")

def halo_fetch(a):
    skip = a.newlabel("L_hskip"); wr = a.newlabel("L_hwr"); spin = a.newlabel("L_hspin"); got = a.newlabel("L_hgot")
    a.L(f"""
    s_cmp_lg_u32 s{sMI}, 0
    s_cbranch_scc1 {skip}
    """)
    st = a.state()
    for r in range(128, 144): a.I(f"v_mov_b32 v{r}, 0")
    a.L(f"""
    s_cmp_eq_u32 s{sG}, 0
    s_cbranch_scc1 {wr}
    s_sub_u32 s{t2}, s{sG}, 1
    s_lshl_b32 s{t2}, s{t2}, 3
    s_add_u32 s{t2}, s{t2}, s{sJ}
    s_lshl_b32 s{t3}, s{t2}, 7
    s_add_u32 s{t3}, s{t3}, {HF}
    s_mov_b32 s{t5}, 0
    """)
    a.label(spin)
    a.L(f"""
    s_load_dwordx2 s[14:15], s[{sWSp}:{sWSp+1}], s{t3} glc
    s_waitcnt lgkmcnt(0)
    s_xor_b32 s14, s14, s{sT}
    s_xor_b32 s15, s15, s{sT}
    s_or_b32 s14, s14, s15
    s_cbranch_scc0 {got}
    s_sleep 1
    s_add_u32 s{t5}, s{t5}, 1
    s_cmp_lt_u32 s{t5}, 0x20000
    s_cbranch_scc1 {spin}
    """)
    a.label(got)
    a.L(f"""
    s_lshl_b32 s{t2}, s{t2}, 12
    s_add_u32 s{t2}, s{t2}, {HK}
    buffer_load_dwordx4 v[128:131], v{vL16}, {srd(SWS)}, s{t2} offen sc1
    buffer_load_dwordx4 v[132:135], v{vL16}, {srd(SWS)}, s{t2} offen offset:1024 sc1
    buffer_load_dwordx4 v[136:139], v{vL16}, {srd(SWS)}, s{t2} offen offset:2048 sc1
    buffer_load_dwordx4 v[140:143], v{vL16}, {srd(SWS)}, s{t2} offen offset:3072 sc1
    s_waitcnt vmcnt(0)
    """)
    a.label(wr)
    a.L(f"""
    v_lshrrev_b32 v56, 2, v{vLane}
    v_mul_u32_u24 v56, {KVROW}, v56
    v_and_b32 v57, 3, v{vLane}
    v_lshl_add_u32 v56, v57, 4, v56
    v_add_u32 v56, {KB}, v56
    ds_write_b128 v56, v[128:131]
    ds_write_b128 v56, v[132:135] offset:64
    ds_write_b128 v56, v[136:139] offset:{VB-KB}
    ds_write_b128 v56, v[140:143] offset:{VB-KB+64}
    s_waitcnt lgkmcnt(0)
    """)
    a.restore(st)
    a.label(skip)

def attention(a):
    KR = 128
    LA = 64; LB = 72; PL = 80; PH = 88; O = 96; OP = 120
    a.L(f"""
    v_and_b32 v56, 31, v{vLane}
    s_lshl_b32 s{t0}, s{sMI}, 5
    s_add_u32 s{t0}, s{t0}, 2
    v_add_u32 v58, s{t0}, v56
    v_mul_u32_u24 v58, {KVROW}, v58
    v_lshrrev_b32 v57, 5, v{vLane}
    s_lshl_b32 s{t0}, s{sTile}, 6
    s_add_u32 s{t0}, s{t0}, {KB}
    v_add_u32 v58, s{t0}, v58
    v_lshl_add_u32 v59, v57, 4, v58
    v_add_u32 v59, {VB-KB}, v59
    v_lshl_add_u32 v58, v57, 5, v58
    """)
    def kread(w):
        o = (7 - w) * 2 * KVROW
        a.I(f"ds_read_b128 {vr(KR+8*w,4)}, v58 offset:{o}", f"k{w}")
        a.I(f"ds_read_b128 {vr(KR+8*w+4,4)}, v58 offset:{o+16}", f"k{w}")
    def vread(w):
        o = (7 - w) * 2 * KVROW
        a.I(f"ds_read_b128 {vr(192+8*w,4)}, v59 offset:{o}", f"v{w}")
        a.I(f"ds_read_b128 {vr(192+8*w+4,4)}, v59 offset:{o+32}", f"v{w}")
    seq = [("k", w) for w in range(8)] + [("v", w) for w in range(8)]
    def nxt():
        if seq:
            t, w = seq.pop(0); (kread if t == "k" else vread)(w)
    for _ in range(4): nxt()
    for w in range(8):
        a.wait(lg=f"k{w}")
        for i in range(4):
            a.I(f"v_dot2_f32_bf16 v{LA+w}, v{QP+i}, v{KR+8*w+i}, {'0' if i == 0 else 'v%d' % (LA+w)}")
            a.I(f"v_dot2_f32_bf16 v{LB+w}, v{QP+4+i}, v{KR+8*w+4+i}, {'0' if i == 0 else 'v%d' % (LB+w)}")
        nxt()
    for w in range(8): a.I(f"v_permlane32_swap_b32 v{LA+w}, v{LB+w}")
    for w in range(8): a.I(f"v_add_f32 v{LA+w}, v{LA+w}, v{LB+w}")
    nxt(); nxt()
    nom = a.newlabel("L_nomask")
    a.L(f"""
    s_or_b32 s{t0}, s{sG}, s{sMI}
    s_cmp_lg_u32 s{t0}, 0
    s_cbranch_scc1 {nom}
    v_mov_b32 v57, 0xff800000
    """)
    for w in range(1, 8):
        a.I(f"v_cmp_gt_u32 vcc, {2*w}, v56")
        a.I(f"v_cndmask_b32 v{LA+w}, v{LA+w}, v57, vcc")
    a.label(nom)
    a.fence(2)
    a.L(f"""
    v_max3_f32 v57, v{LA}, v{LA+1}, v{LA+2}
    v_max3_f32 v56, v{LA+3}, v{LA+4}, v{LA+5}
    v_max3_f32 v57, v57, v{LA+6}, v{LA+7}
    s_mov_b32 s{t0}, 0x3eb8aa3b
    v_max_f32 v57, v57, v56
    """)
    nxt(); nxt()
    for w in range(8): a.I(f"v_sub_f32 v{LA+w}, v{LA+w}, v57")
    for w in range(8): a.I(f"v_mul_f32 v{LA+w}, s{t0}, v{LA+w}")
    for w in range(8): a.I(f"v_exp_f32 v{LA+w}, v{LA+w}")
    a.L(f"""
    v_add_f32 v57, v{LA}, v{LA+1}
    v_add_f32 v{LB}, v{LA+2}, v{LA+3}
    v_add_f32 v{LB+1}, v{LA+4}, v{LA+5}
    v_add_f32 v56, v{LA+6}, v{LA+7}
    v_add_f32 v57, v57, v{LB}
    v_add_f32 v56, v{LB+1}, v56
    v_add_f32 v57, v57, v56
    v_rcp_f32 v57, v57
    s_lshl_b32 s{t0}, s{sJ}, 2
    s_lshl_b32 s{t1}, s{sTile}, 1
    s_add_u32 s{t0}, s{t0}, s{t1}
    s_lshl_b32 s{t0}, s{t0}, 10
    s_add_u32 s{t0}, s{t0}, s{sAct}
    """)
    for w in range(8): a.I(f"v_mul_f32 v{LA+w}, v{LA+w}, v57")
    for w in range(8): a.I(f"v_cvt_pk_bf16_f32 v{PL+w}, v{LA+w}, 0")
    for w in range(8): a.I(f"v_lshlrev_b32 v{PH+w}, 16, v{PL+w}")
    for w in range(8):
        a.wait(lg=f"v{w}")
        for i in range(8):
            a.I(f"v_dot2_f32_bf16 v{O+2*i}, v{192+8*w+i}, v{PL+w}, {'0' if w == 0 else 'v%d' % (O+2*i)}")
            a.I(f"v_dot2_f32_bf16 v{O+2*i+1}, v{192+8*w+i}, v{PH+w}, {'0' if w == 0 else 'v%d' % (O+2*i+1)}")
    for q in range(8): a.I(f"v_cvt_pk_bf16_f32 v{OP+q}, v{O+2*q}, v{O+2*q+1}")
    a.I(f"buffer_store_dwordx4 {vr(OP,4)}, v{vL16}, {srd(SWS)}, s{t0} offen {STMOD}", "own")
    a.I(f"buffer_store_dwordx4 {vr(OP+4,4)}, v{vL16}, {srd(SWS)}, s{t0} offen offset:1024 {STMOD}", "own")

def build(stamps=False, p3delay=0, fine=True):
    a = K(stamps); a.p3delay = p3delay; a.fine = fine
    a.raw(f"; @launch grid=(256,1,1) block=(512,1,1) lds={LDS_BYTES}")
    a.raw('.amdgcn_target "amdgcn-amd-amdhsa--gfx950"\n.text')
    a.raw(f".globl {KN}\n.p2align 8\n.type {KN},@function\n{KN}:")
    prologue(a)
    prep(a)
    a.L(f"s_cmp_ge_u32 s{sJ}, 8\ns_cbranch_scc0 L_qkv")
    st0 = a.state()
    a.L(f"s_cmp_eq_u32 s{sH}, 0\ns_cbranch_scc0 L_ffn_h1")
    st1 = a.state()
    pend = passA(a, True, 0)
    epi_h(a, ACC, sKsA, 0, "p1", TMP, pend)
    epi_h(a, ACC + 16, sKsA, 2, "p1", T2)
    set_aug(a, vAug4)
    def hM(): a.wait(vm=["wb2", "wb3"]); a.I("s_barrier")
    def hp1(): a.wait(vm="p1"); publish_flag(a, 1)
    tile_body(a, 2048, 512, {12: hM, 28: hp1})
    a.stamp(7)
    epi_h(a, ACCB, sKsP, 0, "p2", TMP)
    set_aug(a, vAug5)
    a.I(f"v_xor_b32 v{vPa}, 64, v{vPa}")
    call(a, "L_tileP", TILE_LAST)
    cnt_add(a, 1)
    epi_h(a, ACCB, sKsP, 2, "p2", T2)
    a.stamp(8)
    a.L(f"""
    v_lshrrev_b32 v126, 5, v{vLane}
    v_bfe_u32 v127, v{vLane}, 2, 2
    v_lshl_add_u32 v126, v126, 3, v127
    v_lshlrev_b32 v126, 6, v126
    v_bfe_u32 v127, v{vLane}, 4, 1
    v_lshl_add_u32 v126, v127, 5, v126
    v_and_b32 v127, 3, v{vLane}
    v_lshl_add_u32 v126, v127, 3, v126
    v_add_u32 v{vPa}, 0x10000, v126
    """)
    set_aug(a, vAug6)
    def hp2(): a.wait(vm="p2"); publish_flag(a, 2)
    tile_body(a, 1024, 256, {26: hp2})
    epi_h(a, ACCB, sKsS, 0, "own", TMP)
    a.I("s_branch L_p3s")
    a.restore(st1)
    a.label("L_ffn_h1")
    passA(a, True, 1)
    pend = f_early(a)
    epi_h(a, ACC, sKsA, 4, "own", TMP, pend)
    epi_h(a, ACC + 16, sKsA, 6, "own", T2)
    a.L(f"""
    s_mov_b32 s{sFa}, s{sFlg}
    s_add_u32 s{sFv}, s{sT}, 1
    s_barrier
    s_branch L_p3f
    """)
    vqF = list(a.vq)
    a.restore(st0)
    a.label("L_qkv")
    a.L(f"s_cmp_eq_u32 s{sH}, 0\ns_cbranch_scc0 L_qkv_h1")
    st1 = a.state()
    passA(a, False, 0)
    epi_kv(a, KB)
    halo_store(a, 0, "hst")
    set_aug(a, vAug4)
    def hMq(): a.wait(vm="wb2", lg="kvw"); a.I("s_barrier")
    def hh(): a.wait(vm="hst"); flag_store(a, sFa, f"s{sFv}")
    tile_body(a, 2048, 512, {12: hMq, 28: hh})
    a.stamp(7)
    epi_q(a, QP)
    set_aug(a, vAug6)
    a.I(f"v_xor_b32 v{vPa}, 64, v{vPa}")
    call(a, "L_tileP", TILE_LAST)
    cnt_add(a, 1)
    epi_q(a, QP1)
    a.stamp(8)
    halo_fetch(a)
    a.I(f"s_mov_b32 s{sTile}, 0")
    call(a, "L_attn", ["s_nop 1"])
    for q in range(8): a.I(f"v_mov_b32 v{QP+q}, v{QP1+q}")
    a.I(f"s_mov_b32 s{sTile}, 1")
    call(a, "L_attn", ["s_nop 1"])
    a.I("s_branch L_p3s")
    a.restore(st1)
    a.label("L_qkv_h1")
    passA(a, False, 1)
    pend = f_early(a)
    epi_kv(a, VB, pend)
    halo_store(a, 1, "own")
    a.wait(lg="kvw")
    a.I("s_barrier")
    exp = ["B%d" % j for j in range(NB) for _ in range(2)] + ["own"] * 4
    assert a.vq[-len(exp):] == exp, a.vq
    assert vqF[-len(exp):] == exp, vqF
    a.label("L_p3f")
    a.vq = list(exp); a.lq = []
    a.fence(2)
    phase3_f(a)
    a.I("s_branch L_final")
    a.label("L_p3s")
    a.vq = ["own"]; a.lq = []
    a.fence(2)
    phase3_s(a)
    a.label("L_final")
    a.vq = ["fin"]
    final(a)
    a.label("L_end")
    a.I("s_endpgm")
    a.label("L_tileP")
    a.hist = []; a.fence(2); a.lq = []
    tile_body(a, 2048, 512, {})
    a.I(f"s_setpc_b64 s[{sRet}:{sRet+1}]")
    a.label("L_attn")
    a.hist = []; a.fence(2); a.lq = []
    attention(a)
    a.I(f"s_setpc_b64 s[{sRet}:{sRet+1}]")
    a.raw(".p2align 8\n.rept 64\n  s_nop 0\n.endr\nL_codeend:")
    a.raw(f""".section .rodata,"a"
.p2align 6
.amdhsa_kernel {KN}
  .amdhsa_next_free_vgpr 256
  .amdhsa_next_free_sgpr 102
  .amdhsa_accum_offset 256
  .amdhsa_group_segment_fixed_size 0
  .amdhsa_kernarg_size 88
  .amdhsa_user_sgpr_count 2
  .amdhsa_user_sgpr_kernarg_segment_ptr 1
  .amdhsa_system_sgpr_workgroup_id_x 1
.end_amdhsa_kernel""")
    return "\n".join(a.out) + "\n", a.nins

NA = 7
if __name__ == "__main__":
    ap = argparse.ArgumentParser()
    ap.add_argument("-o", default=f"cdna_kernels/{NAME}.s")
    ap.add_argument("--stamps", action="store_true")
    ap.add_argument("--p3delay", type=int, default=0)
    ap.add_argument("--coarse", action="store_true")
    ap.add_argument("--set", action="append", default=[])
    args = ap.parse_args()
    for kv in args.set:
        k_, v_ = kv.split("=", 1); globals()[k_] = eval(v_)
    txt, n = build(args.stamps, args.p3delay, not args.coarse)
    open(args.o, "w").write(txt)
    print("instructions:", n)
```

```python
import sys, argparse
from asmlib import Asm, parse

NAME = "recurrent_scan__sliding_local_dilated__dense_activation_squared_relu__prompt"
KN = NAME + "_kernel"

ACT = 0x0
RG = 0xA00000
CG = 0xA10000
HK = 0xA40000
HF = 0xAC0000
FL = 0xAD0000
EP = 0xAE0000
WS_SIZE = 0xB00000
STAMP_OFF = 0xF000000
OOB = 0x7FF00000
KB = 65536; KVROW = 144; VB = KB + 144 * KVROW
FR = 110592; FRS = 12288
MISC = 159744
RGL = MISC + 2048
CNT = MISC + 2560
LDS_BYTES = 163840
sS4, sS52, sPw, sMid, sXb = 3, 4, 5, 6, 7
sX, sWQ, sWO, sW1, sB1, sW2, sB2, sOUT, sDBG, sWSp = 8, 10, 12, 16, 18, 20, 22, 24, 26, 28
sTile, sFv = 30, 31
SX, SW, SWS, SC, SO, SB = 32, 36, 40, 44, 48, 52
sWV, sG, sJ, sT, sMI, sH, sS, sXo, sWo_, sM0, sG3, sMH, sNT3, sColA, sColP, sColS, sKsA, sE, sONE, sLO1, sHI1 = range(56, 77)
sAct = 77
sRet = 78
sFlg = 80
sKsP, sKsS = 81, 82
sFa = 83
t0, t1, t2, t3, t4, t5 = 84, 85, 86, 87, 88, 89
STAMP0 = 92
sB3, sA3, sRing = 62, 63, 64

def srd(n): return f"s[{n}:{n+3}]"
def vr(a, n): return f"v[{a}:{a+n-1}]"

vLane = 1
vXo0, vXo1, vWo, vPo, vSo = 2, 3, 4, 5, 6
vB3o = 7
vXa = 8
vWa = 12
vPa = 14
vL16 = 15
vBaug = 16
vR = 20
vAaug = 22
vAug6 = 30
vAug5 = 58
vAug4 = 60
WF = 32
TMP = 48
ACC = 64
ACCB = 96
T2 = 112
XR = 128
P_ACC = 64
NA = 8; NB = 6; NBR = 12
P_B = 128
P_A_f = [224, 232, 240, 248, 32, 40, 48, 8 * 7]
P_A_s = 192
vA3o = 3; vB3a = 4; vPoll = 6; vPolld = 2
FX = 24; FB = 28; FRG = 16; vOo = 18

FBUD = {0: 3, 1: 7}
DMAPAT = {3: 3, 0: 3, 1: 2, 2: 0}
GAT_ISSUE = 14; GAT_FIN = 21
PF1 = False
PF3_AT = []
PRIO_TILE = 2
STMOD = 'sc1'
LDMOD = 'sc1'
PSLEEP = 1
TLBW = 0
NOATOM = False
SDELAY = 0
DBGST = False
PADTO = 0

class K(Asm):
    def __init__(self, stamps=False):
        super().__init__(); self.stamps = stamps; self.fine = True; self.p3delay = 0
    def stamp(self, i):
        if self.stamps:
            self.I(f"s_memrealtime s[{STAMP0}:{STAMP0+1}]")
            if i: self.I(f"s_memtime s[{STAMP0+2}:{STAMP0+3}]")
            self.I("s_waitcnt lgkmcnt(0)")
            self.I(f"v_writelane_b32 v63, s{STAMP0}, {i}")
            if i: self.I(f"v_writelane_b32 v0, s{STAMP0+2}, {i}")
    def dma(self, s, voff, soff, m0base, m0imm, tag, mods=""):
        self.I(f"s_add_u32 m0, s{m0base}, {m0imm}")
        self.I(f"buffer_load_dwordx4 v{voff}, {srd(s)}, s{soff} offen {mods} lds".replace("  ", " "), tag)
    def mk_srd(self, d, p, size):
        self.L(f"s_mov_b32 s{d}, s{p}\ns_mov_b32 s{d+1}, s{p+1}\ns_mov_b32 s{d+2}, {size}\ns_mov_b32 s{d+3}, 0x20000")

class Fill:
    def __init__(self, a): self.a = a; self.q = []
    def add(self, txt, tag=None, atomic=False):
        lines = [t.strip() for t in txt.strip().split("\n") if t.strip()]
        if atomic: self.q.append((len(lines), lambda: [self.a.I(t, tag) for t in lines]))
        else:
            for t in lines: self.q.append((1, (lambda t=t: self.a.I(t, tag))))
    def fn(self, n, f): self.q.append((n, f))
    def pop(self, budget):
        while self.q and budget > 0:
            n, f = self.q.pop(0); f(); budget -= n
    def flush(self): self.pop(1 << 30)

def stage0_dma(a, tag):
    a.dma(SW, vWo, sWo_, sM0, 2048, tag)
    a.dma(SX, vXo0, sXo, sM0, 0, tag)
    a.I(f"s_add_u32 s{sWo_}, s{sWo_}, s{sS4}")
    a.dma(SW, vWo, sWo_, sM0, 3072, tag)
    a.dma(SX, vXo1, sXo, sM0, 1024, tag)

def stage_parts(a, st, tag):
    sl = (st % 4) * 32768
    def w(off, last):
        def f():
            a.dma(SW, vWo, sWo_, sM0, sl + off, tag)
            a.I(f"s_add_u32 s{sWo_}, s{sWo_}, s{sS52 if last else sS4}")
        return f
    def x(v, so, off, adv):
        def f():
            a.dma(SX, v, so, sM0, sl + off, tag)
            if adv: a.I(f"s_add_u32 s{so}, s{so}, 128")
        return f
    return [w(2048, 0), x(vXo0, sXo, 0, 0), w(3072, 0), x(vXo1, sXo, 1024, 1),
            w(4096 + 2048, 0), x(vXo0, sXb, 4096, 0), w(4096 + 3072, 1), x(vXo1, sXb, 4096 + 1024, 1)]

def prologue(a):
    a.L(f"""
    s_cmp_ge_u32 s2, 256
    s_cbranch_scc1 L_end
    s_load_dwordx16 s[8:23], s[0:1], 0
    s_load_dwordx4 s[24:27], s[0:1], 64
    s_load_dwordx2 s[28:29], s[0:1], 80
    s_getpc_b64 s[{t0}:{t1}]
    """)
    a.label("L_cpf")
    if a.stamps: a.I("v_mov_b32 v63, 0")
    a.stamp(0)
    a.L(f"""
    v_lshrrev_b32 v7, 6, v0
    s_and_b32 s{t2}, s2, 0xf8
    v_add_u32 v12, s{t2}, v7
    v_and_b32 v11, 1, v0
    v_lshl_add_u32 v12, v12, 1, v11
    v_lshlrev_b32 v12, 7, v12
    v_min_u32 v12, L_codeend-L_cpf-4, v12
    """)
    a.I(f"global_load_dword v62, v12, s[{t0}:{t1}]", "cpf")
    a.L(f"""
    v_and_b32 v{vLane}, 63, v0
    s_and_b32 s{t0}, s2, 7
    s_lshr_b32 s{t1}, s2, 3
    v_readfirstlane_b32 s{sWV}, v7
    s_lshl_b32 s{sG}, s{t0}, 1
    s_and_b32 s{sG}, s{sG}, 8
    s_and_b32 s{t2}, s{t1}, 7
    s_add_u32 s{sG}, s{sG}, s{t2}
    s_lshr_b32 s{sJ}, s{t1}, 1
    s_and_b32 s{sJ}, s{sJ}, 12
    s_and_b32 s{t2}, s{t0}, 3
    s_add_u32 s{sJ}, s{sJ}, s{t2}
    s_and_b32 s{sMI}, s{sWV}, 3
    s_lshr_b32 s{sH}, s{sWV}, 2
    """)
    if TLBW:
        offs = [16, 48, 64, 40, 56, 72, 80, 80]; cnts = [0, 1, 1, 0, 0, 0, 5, 10]
        co = sum(o << (8 * i) for i, o in enumerate(offs)); cc = sum(o << (4 * i) for i, o in enumerate(cnts))
        a.L(f"""
        s_mov_b32 s{sRet}, {co & 0xffffffff}
        s_mov_b32 s{sRet+1}, {co >> 32}
        s_lshl_b32 s{t2}, s{sWV}, 3
        s_lshr_b64 s[{sRet}:{sRet+1}], s[{sRet}:{sRet+1}], s{t2}
        s_and_b32 s{t3}, s{sRet}, 0xff
        s_load_dwordx2 s[{sRet}:{sRet+1}], s[0:1], s{t3}
        s_lshr_b32 s{t2}, s{t2}, 1
        s_lshr_b32 s{t2}, {cc}, s{t2}
        s_and_b32 s{t2}, s{t2}, 15
        v_min_u32 v61, s{t2}, v{vLane}
        v_lshlrev_b32 v61, 20, v61
        """)
    a.L(f"""
    v_lshrrev_b32 v9, 4, v{vLane}
    v_and_b32 v8, 7, v{vLane}
    v_lshrrev_b32 v10, 3, v{vLane}
    v_lshlrev_b32 v{vL16}, 4, v{vLane}
    v_lshrrev_b32 v24, 5, v{vLane}
    s_mul_i32 s{t4}, s{sJ}, 448
    s_and_b32 s{t5}, s{sJ}, 1
    s_lshl_b32 s{t5}, s{t5}, 6
    s_sub_u32 s{t4}, s{t4}, {8*448}
    s_add_u32 s{sColA}, s{t4}, s{t5}
    s_sub_u32 s{t4}, s{t4}, s{t5}
    s_lshl_b32 s{t2}, s{sJ}, 7
    s_add_u32 s{t3}, s{t2}, 1024
    s_cmp_ge_u32 s{sJ}, 8
    s_cselect_b32 s{sColA}, s{sColA}, s{t3}
    s_cselect_b32 s{sS}, 512, 0
    s_cselect_b32 s{sPw}, 7, 10
    s_cselect_b32 s{t4}, s{t4}, s{t2}
    s_add_u32 s{sS}, s{sS}, 3072
    s_lshl_b32 s{SW+2}, s{sS}, 9
    s_mov_b32 s{SX+2}, 0x200000
    s_mov_b32 s{SX+3}, 0x20000
    s_mov_b32 s{SW+3}, 0x20000
    s_mov_b32 s{SC+3}, 0x20000
    """)
    if PF1:
        a.L(f"""
        v_and_b32 v11, 31, v{vLane}
        v_mul_u32_u24 v11, s{sS}, v11
        s_lshl_b32 s{t0}, s{sMI}, 1
        v_add_u32 v13, s{t0}, v24
        v_min_u32 v12, 2, v13
        v_cndmask_b32 v13, v12, v13, vcc
        """.replace("v_cndmask_b32 v13, v12, v13, vcc", f"v_lshlrev_b32 v13, s{sPw}, v13"))
        a.L(f"""
        v_add_u32 v11, v11, v13
        v_lshlrev_b32 v12, 10, v{vLane}
        s_and_b32 s{t0}, s{sG}, 7
        s_lshl_b32 s{t1}, s{sH}, 3
        s_add_u32 s{t0}, s{t0}, s{t1}
        s_lshl_b32 s{t0}, s{t0}, 5
        s_mul_i32 s{t0}, s{t0}, s{sS}
        s_add_u32 s{t0}, s{t0}, s{t4}
        s_lshl_b32 s{t1}, s{sG}, 1
        s_add_u32 s{t1}, s{t1}, s{sMI}
        s_sub_u32 s{t1}, s{t1}, 2
        s_lshl_b32 s{t1}, s{t1}, 16
        s_lshl_b32 s{t2}, s{sH}, 2
        s_lshr_b32 s{t3}, s{sJ}, 2
        s_add_u32 s{t2}, s{t2}, s{t3}
        s_lshl_b32 s{t2}, s{t2}, 7
        s_add_u32 s{t1}, s{t1}, s{t2}
        s_cmp_ge_u32 s{sMI}, 2
        s_cselect_b32 s{sMid}, s{t1}, s{t0}
        s_cselect_b64 vcc, -1, 0
        s_cselect_b32 s{SO+2}, s{SX+2}, s{SW+2}
        s_mov_b32 s{SO+3}, 0x20000
        v_cndmask_b32 v21, v11, v12, vcc
        s_cmp_eq_u32 s{sH}, 0
        s_cselect_b32 s{sXb}, s{sMid}, {OOB}
        s_cselect_b32 s{sMid}, {OOB}, s{sMid}
        """)
    a.L(f"""
    s_lshr_b32 s{t2}, s2, 2
    s_and_b32 s{t3}, s2, 3
    s_cmp_ge_u32 s{t2}, 24
    s_cselect_b32 s{t4}, 512, 0
    s_cselect_b32 s{t5}, 24, 0
    s_add_u32 s{t4}, s{t4}, 3072
    s_sub_u32 s{t5}, s{t2}, s{t5}
    s_lshl_b32 s{t5}, s{t5}, 7
    s_lshl_b32 s{t3}, s{t3}, 3
    s_add_u32 s{t3}, s{t3}, s{sWV}
    s_lshl_b32 s{t3}, s{t3}, 4
    s_mul_i32 s{t3}, s{t3}, s{t4}
    s_add_u32 s{t3}, s{t3}, s{t5}
    v_mul_u32_u24 v13, s{t4}, v10
    v_lshl_add_u32 v13, v8, 4, v13
    s_lshl_b32 s{SC+2}, s{t4}, 9
    s_lshl_b32 s{t4}, s{t4}, 3
    s_add_u32 s{t4}, s{t4}, s{t3}
    s_cmp_ge_u32 s2, 208
    s_cselect_b32 s{SC+2}, 0, s{SC+2}
    s_lshl_b32 s{t5}, s2, 3
    s_add_u32 s{t5}, s{t5}, s{sWV}
    s_lshl_b32 s{t5}, s{t5}, 10
    s_cmp_ge_u32 s{sJ}, 8
    s_waitcnt lgkmcnt(0)
    s_mov_b32 s{SX}, s{sX}
    s_mov_b32 s{SX+1}, s{sX+1}
    s_cselect_b32 s{SW}, s{sW1}, s{sWQ}
    s_cselect_b32 s{SW+1}, s{sW1+1}, s{sWQ+1}
    """)
    if PF1:
        a.L(f"""
        s_cmp_ge_u32 s{sMI}, 2
        s_cselect_b32 s{SO}, s{SX}, s{SW}
        s_cselect_b32 s{SO+1}, s{SX+1}, s{SW+1}
        """)
        a.I(f"buffer_load_dword v120, v21, {srd(SO)}, s{sXb} offen", "pf")
    a.L(f"""
    s_cmp_ge_u32 s{t2}, 24
    s_cselect_b32 s{SC}, s{sW1}, s{sWQ}
    s_cselect_b32 s{SC+1}, s{sW1+1}, s{sWQ+1}
    """)
    a.I(f"buffer_load_dwordx4 v[32:35], v{vL16}, {srd(SX)}, s{t5} offen", "prow")
    a.I(f"buffer_load_dwordx4 v[36:39], v13, {srd(SC)}, s{t3} offen", "pcol")
    a.I(f"buffer_load_dwordx4 v[40:43], v13, {srd(SC)}, s{t4} offen", "pcol")
    a.L(f"""
    s_mov_b32 s{t3}, {EP}
    s_load_dword s{sE}, s[{sWSp}:{sWSp+1}], s{t3}
    v_xor_b32 v11, v8, v9
    v_lshlrev_b32 v11, 4, v11
    v_lshl_add_u32 v{vXo0}, v10, 10, v11
    v_xor_b32 v{vXo1}, 64, v{vXo0}
    v_add_u32 v{vXo1}, 8192, v{vXo1}
    s_lshl_b32 s{sM0}, s{sWV}, 12
    s_lshl_b32 s{sXo}, s{sG}, 3
    s_add_u32 s{sXo}, s{sXo}, s{sWV}
    s_lshl_b32 s{sXo}, s{sXo}, 14
    v_and_b32 v12, 15, v{vLane}
    v_lshlrev_b32 v13, 2, v9
    v_xor_b32 v12, v12, v13
    v_lshrrev_b32 v13, 3, v12
    v_lshlrev_b32 v13, s{sPw}, v13
    v_and_b32 v12, 7, v12
    v_lshl_add_u32 v12, v12, 4, v13
    v_mad_u32_u24 v{vWo}, v9, s{sS}, v12
    s_lshl_b32 s{sS4}, s{sS}, 2
    s_lshl_b32 s{t3}, s{sWV}, 3
    s_mul_i32 s{sWo_}, s{t3}, s{sS}
    s_add_u32 s{sWo_}, s{sWo_}, s{sColA}
    """)
    if TLBW == 2: a.I(f"global_load_dword v60, v61, s[{sRet}:{sRet+1}]", "tlb")
    stage0_dma(a, "st0")
    if TLBW == 1: a.I(f"global_load_dword v60, v61, s[{sRet}:{sRet+1}]", "tlb")
    if PF1:
        a.I(f"buffer_load_dword v121, v21, {srd(SO)}, s{sMid} offen", "pf")
    a.L(f"""
    s_mul_i32 s{sS52}, s{sS}, 52
    s_mov_b32 s{sONE}, 0x3f803f80
    s_mov_b32 s{sLO1}, 0x00003f80
    s_mov_b32 s{sHI1}, 0x3f800000
    v_and_b32 v13, 3, v{vLane}
    v_and_b32 v22, 1, v9
    v_lshlrev_b32 v26, 12, v22
    v_lshlrev_b32 v22, 5, v22
    v_lshl_add_u32 v22, v13, 3, v22
    v_bfe_u32 v23, v{vLane}, 2, 2
    s_lshl_b32 s{t2}, s{sH}, 1
    v_xor_b32 v25, s{t2}, v23
    v_lshlrev_b32 v27, 12, v24
    v_lshl_add_u32 v27, v23, 8, v27
    v_add3_u32 v27, v27, v22, 64
    v_add_u32 v27, {2048-64}, v27
    v_lshl_add_u32 v{vWa}, v25, 6, v27
    v_xor_b32 v{vWa+1}, 64, v{vWa}
    s_lshl_b32 s{sM0}, s{sMI}, 13
    s_sub_u32 s{t3}, 2, s{sH}
    s_lshl_b32 s{sXo}, s{sG}, 2
    s_add_u32 s{sXo}, s{sXo}, s{sMI}
    s_lshl_b32 s{sXo}, s{sXo}, 8
    s_add_u32 s{sXo}, s{sXo}, s{t3}
    s_lshl_b32 s{sXo}, s{sXo}, 7
    s_add_u32 s{sXb}, s{sXo}, 16384
    s_lshl_b32 s{t3}, s{t3}, 2
    s_add_u32 s{t3}, s{t3}, s{sMI}
    s_lshl_b32 s{t3}, s{t3}, 4
    s_mul_i32 s{sWo_}, s{t3}, s{sS}
    s_add_u32 s{sWo_}, s{sWo_}, s{sColA}
    v_and_b32 v46, 1, v9
    v_lshrrev_b32 v47, 1, v9
    v_lshl_add_u32 v46, v46, 1, v47
    v_lshl_add_u32 v46, v8, 3, v46
    s_lshl_b32 s{t2}, s{sWV}, 8
    s_add_u32 s{t2}, s{t2}, {MISC}
    v_lshl_add_u32 v46, v46, 2, s{t2}
    v_and_b32 v27, 15, v{vLane}
    v_lshl_add_u32 v26, v27, 7, v26
    v_add_u32 v26, s{sM0}, v26
    v_bfe_u32 v27, v{vLane}, 1, 3
    v_xor_b32 v27, v27, v24
    v_lshl_add_u32 v{vXa}, v27, 4, v26
    v_xor_b32 v{vXa+1}, 32, v{vXa}
    v_xor_b32 v{vXa+2}, 64, v{vXa}
    v_xor_b32 v{vXa+3}, 96, v{vXa}
    """)

def prep(a):
    a.stamp(1)
    a.wait(vm="prow")
    a.stamp(2)
    a.L(f"""
    v_dot2_f32_bf16 v44, v32, s{sONE}, 0
    v_dot2_f32_bf16 v45, v32, v32, 0
    v_dot2_f32_bf16 v44, v33, s{sONE}, v44
    v_dot2_f32_bf16 v45, v33, v33, v45
    v_dot2_f32_bf16 v44, v34, s{sONE}, v44
    v_dot2_f32_bf16 v45, v34, v34, v45
    v_dot2_f32_bf16 v44, v35, s{sONE}, v44
    v_dot2_f32_bf16 v45, v35, v35, v45
    """)
    a.wait(vm="pcol")
    for i in range(4):
        a.I(f"v_dot2_f32_bf16 v{48+2*i}, v{36+i}, s{sLO1}, 0")
        a.I(f"v_dot2_f32_bf16 v{49+2*i}, v{36+i}, s{sHI1}, 0")
    for i in range(4):
        a.I(f"v_dot2_f32_bf16 v{48+2*i}, v{40+i}, s{sLO1}, v{48+2*i}")
        a.I(f"v_dot2_f32_bf16 v{49+2*i}, v{40+i}, s{sHI1}, v{49+2*i}")
    a.I("v_permlane32_swap_b32 v44, v45")
    for i in range(4):
        a.I(f"v_permlane32_swap_b32 v{48+2*i}, v{49+2*i}")
    a.I("v_add_f32 v56, v44, v45")
    for i in range(4):
        a.I(f"v_add_f32 v{48+2*i}, v{48+2*i}, v{49+2*i}")
    a.I("v_mov_b32 v57, v56")
    a.I("v_permlane16_swap_b32 v48, v50")
    a.I("v_permlane16_swap_b32 v52, v54")
    a.L("""
    v_add_f32 v48, v48, v50
    v_add_f32 v52, v52, v54
    v_permlane16_swap_b32 v56, v57
    v_add_f32_dpp v48, v48, v48 row_ror:8 row_mask:0xf bank_mask:0xf
    v_add_f32_dpp v52, v52, v52 row_ror:8 row_mask:0xf bank_mask:0xf
    v_add_f32 v56, v56, v57
    """)
    a.I("ds_write2_b32 v46, v48, v52 offset0:0 offset1:4", "cs")
    a.L(f"""
    s_waitcnt lgkmcnt(0)
    s_mul_i32 s{sT}, s{sE}, 0x9E3779B1
    s_add_u32 s{sT}, s{sT}, 0x7F4A7C15
    s_and_b32 s{sT}, s{sT}, 0xfffffffc
    """)
    a.lq = []

def prep_tail(a, F, H):
    if H == 1:
        F.add(f"""
        v_lshlrev_b32 v58, 2, v{vLane}
        v_add_u32 v58, {MISC}, v58
        """)
        for w in range(4):
            F.add(f"ds_read2st64_b32 v[{48+2*w}:{49+2*w}], v58 offset0:{2*w} offset1:{2*w+1}", "cs2")
    F.add(f"""
    v_add_f32_dpp v56, v56, v56 row_ror:8 row_mask:0xf bank_mask:0xf
    s_mov_b32 s{SWS}, s{sWSp}
    s_lshl_b32 s{t4}, s2, 3
    v_add_f32_dpp v56, v56, v56 row_ror:4 row_mask:0xf bank_mask:0xf
    s_add_u32 s{t4}, s{t4}, s{sWV}
    s_lshl_b32 s{t4}, s{t4}, 3
    v_add_f32_dpp v56, v56, v56 row_ror:2 row_mask:0xf bank_mask:0xf
    s_mov_b32 s{SWS+1}, s{sWSp+1}
    s_mov_b32 s{SWS+2}, {WS_SIZE}
    v_add_f32_dpp v56, v56, v56 row_ror:1 row_mask:0xf bank_mask:0xf
    s_mov_b32 s{SWS+3}, 0x20000
    v_mov_b32 v112, 0x3b000000
    v_readlane_b32 s{t2}, v56, 0
    v_readlane_b32 s{t3}, v56, 32
    v_mov_b32 v117, s{sT}
    v_mul_f32 v113, s{t2}, v112
    v_mul_f32 v114, s{t3}, v112
    v_fma_f32 v114, -v113, v113, v114
    v_max_f32 v114, 0, v114
    v_cvt_pk_bf16_f32 v115, v113, v114
    v_and_b32 v115, 0xffff0000, v115
    v_add_f32 v115, 0x3727c5ac, v115
    s_add_u32 s{t4}, s{t4}, {RG}
    v_cvt_pk_bf16_f32 v115, v115, v115
    v_and_b32 v115, 0xffff0000, v115
    v_sqrt_f32 v115, v115
    s_lshr_b32 s{t2}, s2, 2
    v_cvt_pk_bf16_f32 v116, v113, v115
    """)
    F.add(f"""
    s_mov_b64 exec, 1
    buffer_store_dwordx2 v[116:117], off, {srd(SWS)}, s{t4} sc1
    s_mov_b64 exec, -1
    """, "pub", atomic=True)
    if H == 0: return
    F.fn(1, lambda: a.wait(lg="cs2"))
    F.add(f"""
    v_add_f32 v48, v48, v49
    v_add_f32 v50, v50, v51
    v_add_f32 v52, v52, v53
    v_add_f32 v54, v54, v55
    v_add_f32 v48, v48, v50
    s_lshl_b32 s{t2}, s{t2}, 9
    v_add_f32 v52, v52, v54
    s_and_b32 s{t3}, s2, 3
    s_mul_i32 s{t3}, s{t3}, {3328*8}
    s_add_u32 s{t2}, s{t2}, s{t3}
    s_add_u32 s{t2}, s{t2}, {CG}
    v_add_f32 v118, v48, v52
    v_mov_b32 v119, s{sT}
    v_lshlrev_b32 v58, 3, v{vLane}
    """)
    F.add(f"""
    s_cmp_eq_u32 s{sMI}, 0
    s_cselect_b32 s{t2}, s{t2}, {OOB}
    s_cmp_ge_u32 s2, 208
    s_cselect_b32 s{t2}, {OOB}, s{t2}
    """, atomic=True)
    F.add(f"buffer_store_dwordx2 v[118:119], v58, {srd(SWS)}, s{t2} offen sc1", "pub")

def prefetch3(a, F, part):
    if part == 0:
        F.add(f"""
        s_mov_b32 s{SC}, s{sW2}
        s_mov_b32 s{SC+1}, s{sW2+1}
        s_mov_b32 s{SC+2}, {1792*1024}
        v_lshlrev_b32 v57, 7, v{vLane}
        s_lshr_b32 s{t2}, s2, 3
        s_mul_i32 s{sPw}, s{t2}, 57344
        s_lshl_b32 s{t3}, s{sMI}, 13
        s_add_u32 s{sPw}, s{sPw}, s{t3}
        """)
        F.add(f"buffer_load_dword v56, v57, {srd(SC)}, s{sPw} offen", "pf")
    elif part == 1:
        F.add(f"s_add_u32 s{sPw}, s{sPw}, 32768")
        F.add(f"buffer_load_dword v55, v57, {srd(SC)}, s{sPw} offen", "pf")

def setup_late(a, F, H, ffn):
    F.add(f"""
    s_and_b32 s{t2}, s2, 7
    s_lshr_b32 s{t3}, s2, 3
    s_lshl_b32 s{sG3}, s{t2}, 1
    s_and_b32 s{t2}, s{t3}, 1
    s_add_u32 s{sG3}, s{sG3}, s{t2}
    s_bfe_u32 s{sMH}, s{t3}, 0x10001
    s_lshr_b32 s{sNT3}, s{t3}, 2
    """)
    if ffn:
        F.add(f"""
        s_add_u32 s{sColP}, s{sColA}, 256
        s_sub_u32 s{t3}, s{sJ}, 8
        s_mul_i32 s{t4}, s{t3}, 448
        s_add_u32 s{t5}, s{t4}, 384
        s_mul_i32 s{t2}, s{t3}, 14
        s_add_u32 s{t2}, s{t2}, 32
        s_add_u32 s{sKsA}, s{t2}, 2
        s_add_u32 s{sKsS}, s{t2}, 12
        """)
        F.add(f"""
        s_bitcmp1_b32 s{sJ}, 0
        s_cselect_b32 s{sColS}, s{t4}, s{t5}
        s_cselect_b32 s{sKsA}, s{sKsA}, s{t2}
        s_cselect_b32 s{sKsS}, s{t2}, s{sKsS}
        """, atomic=True)
        F.add(f"s_add_u32 s{sKsP}, s{sKsA}, 8")
    else:
        F.add(f"s_lshl_b32 s{sColP}, s{sJ}, 7")
    F.add(f"""
    v_bfe_u32 v56, v{vLane}, 4, 1
    v_lshlrev_b32 v56, 2, v56
    v_and_b32 v57, 7, v{vLane}
    v_xor_b32 v56, v57, v56
    v_lshlrev_b32 v56, 4, v56
    v_lshrrev_b32 v57, 3, v{vLane}
    v_lshl_add_u32 v{vB3o}, v57, 10, v56
    """)
    if H == 0:
        F.add(f"v_mad_u32_u24 v{vPo}, v57, s{sS}, v56")
        if ffn: F.add(f"""
        v_lshrrev_b32 v56, 2, v{vLane}
        v_mul_u32_u24 v56, s{sS}, v56
        v_and_b32 v57, 3, v{vLane}
        v_lshl_add_u32 v{vSo}, v57, 4, v56
        """)
        F.add(f"""
        v_lshl_add_u32 v56, v24, 3, v23
        v_lshl_add_u32 v56, v56, 7, v22
        v_lshrrev_b32 v57, 1, v23
        v_lshl_add_u32 v{vPa}, v57, 6, v56
        """)
    F.add(f"""
    s_lshl_b32 s{t2}, s{sG}, 2
    s_add_u32 s{t2}, s{t2}, s{sMI}
    s_mul_i32 s{sAct}, s{t2}, {144*1024}
    s_lshr_b32 s{t2}, s{t2}, 1
    s_lshl_b32 s{t2}, s{t2}, 3
    s_lshr_b32 s{t3}, s{sJ}, 1
    s_add_u32 s{t2}, s{t2}, s{t3}
    s_lshl_b32 s{t2}, s{t2}, 7
    s_and_b32 s{t3}, s{sJ}, 1
    s_lshl_b32 s{t3}, s{t3}, 4
    s_add_u32 s{t2}, s{t2}, s{t3}
    s_and_b32 s{t3}, s{sMI}, 1
    s_lshl_b32 s{t3}, s{t3}, 3
    s_add_u32 s{t2}, s{t2}, s{t3}
    s_add_u32 s{sFlg}, s{t2}, {FL + 4*H}
    """)

GV = 112
def gather_lines():
    L = []
    for kq in range(4):
        L.append(f"s_mov_b32 s{t2}, {CG + kq*3328*8}\nbuffer_load_dwordx2 v[{GV+2*kq}:{GV+2*kq+1}], v124, {srd(SWS)}, s{t2} offen sc1")
    L.append(f"s_mov_b32 s{t2}, {RG}\nbuffer_load_dwordx2 v[{GV+8}:{GV+9}], v125, {srd(SWS)}, s{t2} offen sc1")
    return L

def gather_setup(a, F, ffn):
    F.fn(1, lambda: a.wait(vm="pf"))
    F.add(f"""
    v_lshl_add_u32 v59, v24, 2, s{sMI}
    v_and_b32 v127, 31, v{vLane}
    """)
    if ffn:
        F.add(f"""
        v_lshl_add_u32 v126, v59, 6, s{sColA}
        v_mov_b32 v125, s{sColS}
        v_cmp_le_u32 vcc, 6, v59
        s_mov_b32 s{SO}, s{sB1}
        s_mov_b32 s{SO+1}, s{sB1+1}
        v_cndmask_b32 v126, v126, v125, vcc
        s_mov_b32 s{SO+2}, {1792*2}
        s_mov_b32 s{SO+3}, 0x20000
        v_lshl_add_u32 v126, v127, 1, v126
        v_lshlrev_b32 v124, 2, v126
        v_add_u32 v124, {1536*8}, v124
        """)
        F.add(f"buffer_load_ushort v{GV+10}, v126, {srd(SO)}, 0 offen", "gat")
    else:
        F.add(f"""
        v_lshrrev_b32 v126, 1, v59
        v_add_u32 v126, 1, v126
        v_cmp_gt_u32 vcc, 3, v126
        v_and_b32 v125, 1, v59
        v_lshl_add_u32 v125, v125, 5, v127
        v_cndmask_b32 v126, 0, v126, vcc
        s_lshl_b32 s{t3}, s{sJ}, 6
        v_lshl_add_u32 v126, v126, 9, v125
        v_add_lshl_u32 v124, v126, s{t3}, 3
        v_mov_b32 v{GV+10}, 0
        """)
    F.add(f"""
    s_lshl_b32 s{t4}, s{sG}, 2
    s_add_u32 s{t4}, s{t4}, s{sMI}
    s_lshl_b32 s{t4}, s{t4}, 5
    v_add_lshl_u32 v125, v127, s{t4}, 3
    v_lshlrev_b32 v59, 8, v59
    v_lshl_add_u32 v59, v127, 3, v59
    v_add_u32 v59, {MISC}, v59
    s_lshl_b32 s{t4}, s{sMI}, 7
    s_add_u32 s{t4}, s{t4}, {RGL}
    v_lshl_add_u32 v58, v127, 2, s{t4}
    """)

def baug_lines(p, tmp):
    return f"""
    v_cmp_gt_u32 vcc, 32, v{vLane}
    v_xor_b32 v{p}, 0x8000, v{p}
    v_and_b32 v{tmp}, 0xffff, v{p}
    v_lshl_or_b32 v{tmp}, v{tmp}, 16, v{tmp}
    v_cndmask_b32 v{vBaug}, 0, v{tmp}, vcc
    v_cndmask_b32 v{vBaug+1}, 0, v{p}, vcc
    v_and_b32 v{tmp}, 0xffff0000, v{p}
    v_mov_b32 v{vBaug+2}, 0
    v_mov_b32 v{vBaug+3}, 0
    v_rcp_f32 v{vR}, v{tmp}
    """

def gather_finish(a, F):
    def chk():
        a.wait(vm="gat")
        ok = a.newlabel("L_gok"); spin = a.newlabel("L_gspin")
        def check():
            a.L(f"""
            v_xor_b32 v126, s{sT}, v{GV+1}
            v_xor_b32 v127, s{sT}, v{GV+3}
            v_xor_b32 v123, s{sT}, v{GV+5}
            v_or3_b32 v126, v126, v127, v123
            v_xor_b32 v127, s{sT}, v{GV+7}
            v_xor_b32 v123, s{sT}, v{GV+9}
            v_or3_b32 v126, v126, v127, v123
            v_cmp_ne_u32 vcc, 0, v126
            """)
        check()
        a.I(f"s_cbranch_vccz {ok}")
        st = a.state()
        a.I(f"s_mov_b32 s{t5}, 0")
        a.label(spin)
        a.I("s_sleep 2")
        for l in gather_lines(): a.L(l)
        a.I("s_waitcnt vmcnt(0)")
        check()
        a.L(f"""
        s_cbranch_vccz {ok}
        s_add_u32 s{t5}, s{t5}, 1
        s_cmp_lt_u32 s{t5}, 0x8000
        s_cbranch_scc1 {spin}
        """)
        a.restore(st)
        a.label(ok)
        a.fence(1)
    F.fn(10, chk)
    F.add(f"ds_write_b32 v58, v{GV+8}", "augw")
    F.add(f"""
    v_add_f32 v{GV}, v{GV}, v{GV+2}
    v_add_f32 v{GV+4}, v{GV+4}, v{GV+6}
    v_mov_b32 v126, 0
    v_add_f32 v{GV}, v{GV}, v{GV+4}
    v_mov_b32 v127, {CNT}
    v_cvt_pk_bf16_f32 v{GV+1}, v{GV}, v{GV}
    """)
    F.add(f"ds_write_b32 v127, v126", "augw")
    F.add(f"""
    v_and_b32 v{GV+2}, 0xffff0000, v{GV+1}
    v_sub_f32 v{GV}, v{GV}, v{GV+2}
    v_and_b32 v{GV+1}, 0xffff, v{GV+1}
    v_cvt_pk_bf16_f32 v{GV+2}, v{GV}, v{GV}
    v_and_b32 v{GV+3}, 0xffff0000, v{GV+2}
    v_sub_f32 v{GV}, v{GV}, v{GV+3}
    v_or_b32 v{GV+2}, v{GV+1}, v{GV+3}
    v_cvt_pk_bf16_f32 v{GV+4}, v{GV}, 0
    v_lshl_or_b32 v{GV+3}, v{GV+10}, 16, v{GV+4}
    """)
    F.add(f"ds_write_b64 v59, v[{GV+2}:{GV+3}]", "augw")
    F.add(baug_lines(GV + 8, GV + 9))

def pair_parts(a, p, tag):
    def mk(ii):
        def f():
            if ii == 0:
                a.L(f"""
                s_lshl_b32 s{sPw}, s{sMI}, 6
                s_add_u32 s{sPw}, s{sPw}, {256*p}
                s_mul_i32 s{sPw}, s{sPw}, s{sS}
                s_add_u32 s{sPw}, s{sPw}, s{sColP}
                s_lshl_b32 s{sXb}, s{sS}, 3
                """)
            a.dma(SW, vPo, sPw, sM0, p * 32768 + ii * 1024, tag)
            if ii < 7: a.I(f"s_add_u32 s{sPw}, s{sPw}, s{sXb}")
        return f
    return [mk(i) for i in range(8)]

def single_parts(a, tag):
    def mk(ii):
        def f():
            if ii == 0:
                a.L(f"""
                s_lshl_b32 s{sPw}, s{sMI}, 7
                s_mul_i32 s{sPw}, s{sPw}, s{sS}
                s_add_u32 s{sPw}, s{sPw}, s{sColS}
                s_lshl_b32 s{sXb}, s{sS}, 4
                """)
            a.dma(SW, vSo, sPw, sM0, 65536 + ii * 1024, tag)
            if ii < 7: a.I(f"s_add_u32 s{sPw}, s{sPw}, s{sXb}")
        return f
    return [mk(i) for i in range(8)]

def passA_reads(a, n):
    s, k = divmod(n, 4)
    if k == 0 and s in (2, 4, 6):
        for r in (vXa, vXa + 1, vXa + 2, vXa + 3, vWa, vWa + 1):
            a.I(f"v_xor_b32 v{r}, 0x10000, v{r}")
    o = (s & 1) * 32768
    wf = WF + 8 * (n & 1)
    tag = f"r{n}"
    a.I(f"ds_read_b64_tr_b16 {vr(wf,2)}, v{vWa} offset:{o + k*8192}", tag)
    a.I(f"ds_read_b64_tr_b16 {vr(wf+2,2)}, v{vWa} offset:{o + k*8192 + 1024}", tag)
    a.I(f"ds_read_b128 {vr(XR+4*n,4)}, v{vXa+k} offset:{o}", tag)
    a.I(f"ds_read_b64_tr_b16 {vr(wf+4,2)}, v{vWa+1} offset:{o + k*8192}", tag + "b")
    a.I(f"ds_read_b64_tr_b16 {vr(wf+6,2)}, v{vWa+1} offset:{o + k*8192 + 1024}", tag + "b")

def passA(a, ffn, H):
    F = Fill(a)
    for p in stage_parts(a, 2 - H, f"st{2-H}"): p()
    prep_tail(a, F, H); setup_late(a, F, H, ffn)
    if H == 1: gather_setup(a, F, ffn)
    a.stamp(3)
    a.wait(vm="st0")
    a.I("s_barrier")
    a.stamp(4)
    passA_reads(a, 0)
    pend = stage_parts(a, 3, "st3") if H == 0 else []
    for n in range(32):
        s, k = divmod(n, 4)
        wf = WF + 8 * (n & 1)
        c0 = vr(ACC,16) if n else "0"; c1 = vr(ACC+16,16) if n else "0"
        np_ = DMAPAT[k] if (s or k == 3) else (2 if k == 2 else 3)
        a.wait(lg=f"r{n}")
        a.I(f"v_mfma_f32_32x32x16_bf16 {vr(ACC,16)}, {vr(wf,4)}, {vr(XR+4*n,4)}, {c0}")
        if pend and np_: pend.pop(0)(); np_ -= 1
        F.pop(FBUD[H] // 2)
        a.wait(lg=f"r{n}b")
        a.I(f"v_mfma_f32_32x32x16_bf16 {vr(ACC+16,16)}, {vr(wf+4,4)}, {vr(XR+4*n,4)}, {c1}")
        if n < 31: passA_reads(a, n + 1)
        for _ in range(np_):
            if pend: pend.pop(0)()
        F.pop(FBUD[H] - FBUD[H] // 2 + (3 if k == 2 and H == 0 else 0))
        if H == 1:
            if n == GAT_ISSUE:
                F.flush()
                for l in gather_lines(): F.add(l, "gat", atomic=True)
            if n == GAT_FIN: F.flush(); gather_finish(a, F)
            if n in PF3_AT: prefetch3(a, F, PF3_AT.index(n))
        if H == 0 and n == 18: F.flush()
        if a.stamps and a.fine and k == 2: a.stamp(16 + 2 * s)
        if k == 2:
            if s == 7: F.flush(); a.wait(lg="augw")
            if s < 7: a.wait(vm=f"st{s+1}")
            a.I("s_barrier")
            if a.stamps and a.fine: a.stamp(17 + 2 * s)
            assert not pend
            if H == 0:
                if 1 <= s <= 4: pend = stage_parts(a, s + 3, f"st{s+3}")
                if s == 5: pend = pair_parts(a, 0, "wb1")
                if s == 6: pend = pair_parts(a, 1, "wb2")
                if s == 7 and ffn: pend = single_parts(a, "wb3")
            if s == 7:
                a.L(f"""
                v_and_b32 v126, 31, v{vLane}
                v_lshlrev_b32 v127, 3, v126
                v_add_u32 v127, {MISC}, v127
                v_mov_b32 v{vAaug+2}, 0
                v_mov_b32 v{vAaug+3}, 0
                v_mov_b32 v{vAaug+6}, 0
                v_mov_b32 v{vAaug+7}, 0
                """)
                if H == 0:
                    a.L(f"""
                    s_lshl_b32 s{t0}, s{sMI}, 7
                    s_add_u32 s{t0}, s{t0}, {RGL}
                    v_lshl_add_u32 v126, v126, 2, s{t0}
                    """)
                    a.I(f"ds_read_b32 v125, v126", "augp")
                a.I(f"ds_read_b64 {vr(vAaug,2)}, v127 offset:{512*H}", "augr")
                a.I(f"ds_read_b64 {vr(vAaug+4,2)}, v127 offset:{512*H+256}", "augr")
                if H == 0:
                    a.I(f"ds_read_b64 {vr(vAug4,2)}, v127 offset:1024", "augr")
                    a.I(f"ds_read_b64 {vr(vAug5 if ffn else vAug6,2)}, v127 offset:1280", "augr")
                    if ffn: a.I(f"ds_read_b64 {vr(vAug6,2)}, v127 offset:1536", "augr")
    if H == 0:
        a.wait(lg="augp")
        a.L(baug_lines(125, 126))
    a.wait(lg="augr")
    a.I(f"v_mfma_f32_32x32x16_bf16 {vr(ACC,16)}, {vr(vAaug,4)}, {vr(vBaug,4)}, {vr(ACC,16)}")
    a.I(f"v_mfma_f32_32x32x16_bf16 {vr(ACC+16,16)}, {vr(vAaug+4,4)}, {vr(vBaug,4)}, {vr(ACC+16,16)}")
    a.wait(vm=["wb1", "pf"])
    a.I("s_barrier")
    a.stamp(6)
    return pend

def tile_body(a, kstr, secoff, hooks):
    a.I(f"s_setprio {PRIO_TILE}")
    def rd(n):
        wf = WF + 4 * (n & 3)
        a.I(f"ds_read_b64_tr_b16 {vr(wf,2)}, v{vPa} offset:{n*kstr}", f"t{n}")
        a.I(f"ds_read_b64_tr_b16 {vr(wf+2,2)}, v{vPa} offset:{n*kstr+secoff}", f"t{n}")
    for n in range(3): rd(n)
    a.I(f"v_mfma_f32_32x32x16_bf16 {vr(ACCB,16)}, {vr(vAaug,4)}, {vr(vBaug,4)}, 0")
    for n in range(32):
        wf = WF + 4 * (n & 3)
        a.wait(lg=f"t{n}")
        a.I(f"v_mfma_f32_32x32x16_bf16 {vr(ACCB,16)}, {vr(wf,4)}, {vr(XR+4*n,4)}, {vr(ACCB,16)}")
        if n in hooks: hooks[n]()
        if n + 3 < 32: rd(n + 3)
    a.I("s_setprio 0")

def set_aug(a, r):
    a.I(f"v_mov_b32 v{vAaug}, v{r}")
    a.I(f"v_mov_b32 v{vAaug+1}, v{r+1}")

def call(a, label, last):
    a.I(f"s_getpc_b64 s[{t0}:{t1}]")
    l = a.newlabel("L_pc")
    a.label(l)
    a.I(f"s_add_u32 s{t0}, s{t0}, {label}-{l}")
    a.I(f"s_addc_u32 s{t1}, s{t1}, 0")
    a.I(f"s_swappc_b64 s[{sRet}:{sRet+1}], s[{t0}:{t1}]")
    a.hist = [parse(x) for x in last]

TILE_LAST = [f"v_mfma_f32_32x32x16_bf16 {vr(ACCB,16)}, {vr(WF+12,4)}, {vr(XR+124,4)}, {vr(ACCB,16)}", "s_nop 1"]

def flag_store(a, soff, valexpr):
    a.L(f"""
    v_mov_b32 v62, {valexpr}
    s_mov_b64 exec, 1
    """)
    a.I(f"buffer_store_dword v62, off, {srd(SWS)}, s{soff} sc1", "flag")
    a.I("s_mov_b64 exec, -1")

def publish_flag(a, p):
    a.I(f"s_add_u32 s{t0}, s{sT}, {p}")
    flag_store(a, sFlg, f"s{t0}")

def cnt_add(a, v):
    a.L(f"""
    v_mov_b32 v62, {v}
    v_mov_b32 v21, {CNT}
    s_mov_b64 exec, 1
    """)
    a.I("ds_add_u32 v21, v62", "cnt")
    a.I("s_mov_b64 exec, -1")

def cnt_wait(a, shift):
    ok = a.newlabel("L_cok"); spin = a.newlabel("L_cspin")
    a.I(f"v_mov_b32 v21, {CNT}")
    a.label(spin)
    a.L(f"""
    ds_read_b32 v62, v21
    s_waitcnt lgkmcnt(0)
    v_readfirstlane_b32 s{t0}, v62
    s_bfe_u32 s{t0}, s{t0}, {0x40000 + shift}
    s_cmp_lg_u32 s{t0}, 4
    s_cbranch_scc1 {spin}
    """)
    a.lq = []

def epi_h(a, acc, ksreg, ksadd, tag, tmp, pend=None):
    for r in range(16):
        a.I(f"v_max_f32 v{acc+r}, 0, v{acc+r}")
        if pend and r % 4 == 3: pend.pop(0)()
    for r in range(16):
        a.I(f"v_mul_f32 v{acc+r}, v{acc+r}, v{acc+r}")
        if pend and r % 4 == 3: pend.pop(0)()
    for q in range(8):
        a.I(f"v_cvt_pk_bf16_f32 v{tmp+q}, v{acc+2*q}, v{acc+2*q+1}")
    while pend: pend.pop(0)()
    a.I(f"s_add_u32 s{t0}, s{ksreg}, {ksadd}")
    a.I(f"s_lshl_b32 s{t0}, s{t0}, 10")
    a.I(f"s_add_u32 s{t0}, s{t0}, s{sAct}")
    a.I(f"buffer_store_dwordx4 {vr(tmp,4)}, v{vL16}, {srd(SWS)}, s{t0} offen {STMOD}", tag)
    a.I(f"buffer_store_dwordx4 {vr(tmp+4,4)}, v{vL16}, {srd(SWS)}, s{t0} offen offset:1024 {STMOD}", tag)

def f_order():
    ev = lambda t: [2 * t, 2 * t + 1]
    od = lambda t: [14 + 2 * t, 14 + 2 * t + 1]
    La = ev(0) + ev(1) + ev(2) + ev(3) + od(1) + od(2) + od(3) + od(4)
    Lb = ev(4) + od(5) + ev(5) + od(6)
    Lc = ev(6) + od(0)
    return La + Lb + Lc

def f_bdma_parts(a, j, order):
    off = order[j] * 16384
    def p0():
        a.I(f"s_add_u32 s{t0}, s{sB3}, {off}")
        a.dma(SC, vB3o, t0, sRing, (j % NB) * 2048, f"B{j}")
    def p1():
        a.I(f"s_add_u32 s{t0}, s{sB3}, {off + 8192}")
        a.dma(SC, vB3o, t0, sRing, (j % NB) * 2048 + 1024, f"B{j}")
    return [p0, p1]

def f_early(a):
    order = f_order()
    a.mk_srd(SC, sW2, 1792 * 1024)
    a.L(f"""
    s_mul_i32 s{sB3}, s{sMI}, {28*16384}
    s_lshl_b32 s{t0}, s{sNT3}, 7
    s_add_u32 s{sB3}, s{sB3}, s{t0}
    s_mul_i32 s{sRing}, s{sMI}, {FRS}
    s_add_u32 s{sRing}, s{sRing}, {FR}
    """)
    return [p for j in range(NB) for p in f_bdma_parts(a, j, order)]

sPo = 90
def poll_setup(a, ffn_members):
    a.L(f"""
    s_lshl_b32 s{sPo}, s{sG3}, 1
    s_add_u32 s{sPo}, s{sPo}, s{sMH}
    s_lshl_b32 s{sPo}, s{sPo}, 10
    s_lshl_b32 s{t1}, s{sMI}, 7
    s_add_u32 s{sPo}, s{sPo}, s{t1}
    s_add_u32 s{sPo}, s{sPo}, {FL + (512 if ffn_members else 0)}
    """)

def poll_issue(a, tag=None):
    a.I(f"s_load_dwordx8 s[8:15], s[{sWSp}:{sWSp+1}], s{sPo} glc")

def poll_check(a, tag, mask, thr):
    ok = a.newlabel("L_pok"); spin = a.newlabel("L_pspin")
    a.I(f"s_mov_b32 s{t5}, 0")
    a.I(f"s_add_u32 s{t1}, s{sT}, {thr}")
    a.label(spin)
    a.I("s_waitcnt lgkmcnt(0)")
    a.lq = []
    ws_ = [i for i in range(8) if mask >> i & 1]
    for i in ws_: a.I(f"s_sub_u32 s{8+i}, s{8+i}, s{t1}")
    for i in ws_[1:]: a.I(f"s_max_u32 s{8+ws_[0]}, s{8+ws_[0]}, s{8+i}")
    a.L(f"""
    s_cmp_lt_u32 s{8+ws_[0]}, {4-thr}
    s_cbranch_scc1 {ok}
    s_sleep {PSLEEP}
    """)
    poll_issue(a)
    a.L(f"""
    s_add_u32 s{t5}, s{t5}, 1
    s_cmp_lt_u32 s{t5}, 0x40000
    s_cbranch_scc1 {spin}
    s_waitcnt lgkmcnt(0)
    """)
    a.label(ok)

def p3_addr(a, f):
    a.L(f"""
    v_bfe_u32 v22, v{vLane}, 2, 2
    v_lshrrev_b32 v23, 5, v{vLane}
    v_lshl_add_u32 v23, v23, {2 if f else 4}, v22
    v_lshlrev_b32 v23, 7, v23
    v_lshrrev_b32 v22, 1, v22
    v_lshl_add_u32 v23, v22, 6, v23
    v_bfe_u32 v22, v{vLane}, 4, 1
    v_lshl_add_u32 v23, v22, 5, v23
    v_and_b32 v22, 3, v{vLane}
    v_lshl_add_u32 v23, v22, 3, v23
    v_add_u32 v{vB3a}, s{sRing}, v23
    v_xor_b32 v{vB3a+1}, 64, v{vB3a}
    v_add_u32 v{vA3o}, {144*1024}, v{vL16}
    s_lshl_b32 s{t0}, s{sG3}, 1
    s_add_u32 s{t0}, s{t0}, s{sMH}
    s_mul_i32 s{sA3}, s{t0}, {2*144*1024}
    s_mul_i32 s{t0}, s{sMI}, {(28 if f else 8)*1024}
    s_add_u32 s{sA3}, s{sA3}, s{t0}
    """)
    if f: a.I(f"s_add_u32 s{sA3}, s{sA3}, {32*1024}")

def final_loads(a):
    a.mk_srd(SB, sB2, 1024)
    a.mk_srd(SO, sOUT, 0x200000)
    a.L(f"""
    s_lshl_b32 s{t0}, s{sG3}, 1
    s_add_u32 s{t0}, s{t0}, s{sMH}
    s_lshl_b32 s{t0}, s{t0}, 3
    s_add_u32 s{t0}, s{t0}, s{sWV}
    s_lshl_b32 s{t0}, s{t0}, 3
    v_lshrrev_b32 v22, 3, v{vLane}
    v_add_u32 v22, s{t0}, v22
    v_and_b32 v23, 7, v{vLane}
    v_lshlrev_b32 v23, 4, v23
    s_lshl_b32 s{t1}, s{sNT3}, 7
    v_add_u32 v23, s{t1}, v23
    v_lshl_add_u32 v{vOo}, v22, 10, v23
    v_lshlrev_b32 v22, 3, v22
    s_mov_b32 s{t0}, {RG}
    """)
    a.I(f"buffer_load_dwordx4 {vr(FX,4)}, v{vOo}, {srd(SX)}, 0 offen", "fin")
    a.I(f"buffer_load_dwordx4 {vr(FB,4)}, v23, {srd(SB)}, 0 offen", "fin")
    a.I(f"buffer_load_dwordx2 {vr(FRG,2)}, v22, {srd(SWS)}, s{t0} offen sc1", "fin")

def a_load(a, r, ksoff, tag):
    a.I(f"s_add_u32 s{t0}, s{sA3}, {ksoff*1024}")
    a.I(f"buffer_load_dwordx4 {vr(r,4)}, v{vL16}, {srd(SWS)}, s{t0} offen {LDMOD}", tag)
    a.I(f"buffer_load_dwordx4 {vr(r+4,4)}, v{vA3o}, {srd(SWS)}, s{t0} offen {LDMOD}", tag)

def mfma4(a, b, ar, first=False):
    for mt in range(2):
        for nt in range(2):
            c = P_ACC + 16 * (2 * mt + nt)
            a.I(f"v_mfma_f32_32x32x16_bf16 {vr(c,16)}, {vr(b+4*nt,4)}, {vr(ar+4*mt,4)}, {'0' if first else vr(c,16)}")

def write_partial(a, f):
    a.I(f"v_add_u32 v22, s{sRing}, v{vL16}")
    if f: a.I(f"v_add_u32 v23, {65536 - FR - 12*1024}, v22")
    for q in range(16):
        if f and q == 12: cnt_wait(a, 4)
        src = 23 if (f and q >= 12) else 22
        a.I(f"v_xor_b32 v{8 + (q & 3)}, {(q & 7) << 5}, v{src}")
        a.I(f"ds_write_b128 v{8 + (q & 3)}, {vr(P_ACC + 4*q, 4)} offset:{q*1024}", "pw")

def delay_until(a):
    l = a.newlabel("L_dly")
    a.I(f"v_readlane_b32 s{t2}, v63, 0")
    a.I(f"s_add_u32 s{t2}, s{t2}, {a.p3delay}")
    a.label(l)
    a.L(f"""
    s_sleep 2
    s_memrealtime s[{t0}:{t1}]
    s_waitcnt lgkmcnt(0)
    s_sub_u32 s{t0}, s{t0}, s{t2}
    s_cmp_lt_i32 s{t0}, 0
    s_cbranch_scc1 {l}
    """)

AREG = [224, 232, 240, 248, 32, 40, 48, 0]
def phase3_f(a):
    na = NA
    areg = [224, 232, 240, 248, 32, 40, 48][:na]
    order = f_order()
    a.stamp(9)
    p3_addr(a, True)
    poll_setup(a, True)
    def trd(j):
        b = P_B + 8 * (j % NBR); o = (j % NB) * 2048
        for nt in range(2):
            a.I(f"ds_read_b64_tr_b16 {vr(b+4*nt,2)}, v{vB3a+nt} offset:{o}", f"b{j}")
            a.I(f"ds_read_b64_tr_b16 {vr(b+4*nt+2,2)}, v{vB3a+nt} offset:{o+1024}", f"b{j}")
    for j in range(NBR):
        a.wait(vm=f"B{j}")
        trd(j)
        if j >= 1:
            a.wait(lg=f"b{j-1}")
            for p in f_bdma_parts(a, j - 1 + NB, order): p()
        if j == NB:
            a.wait(vm="own"); flag_store(a, sFa, f"s{sFv}")
        if j == NBR - 2:
            if a.p3delay: delay_until(a)
            poll_issue(a, "pollA")
    a.wait(lg=f"b{NBR-1}")
    for p in f_bdma_parts(a, NBR - 1 + NB, order): p()
    a.stamp(10)
    poll_check(a, "pollA", 0xFF, 1)
    a.stamp(11)
    for j in range(na): a_load(a, areg[j], order[j], f"A{j}")
    final_loads(a)
    nxt = NBR + NB
    for j in range(28):
        a.wait(vm=f"A{j}", lg=f"b{j}")
        if a.fine: a.stamp(32 + j)
        mfma4(a, P_B + 8 * (j % NBR), areg[j % na], j == 0)
        if j >= 1 and j - 1 + NBR < 28 and nxt < 28:
            a.wait(lg=f"b{j-1+NBR}")
            for p in f_bdma_parts(a, nxt, order): p()
            nxt += 1
        if j + NBR < 28:
            a.wait(vm=f"B{j+NBR}")
            trd(j + NBR)
        if j + na == 16 - 2: poll_issue(a, "pollB")
        if j + na == 16: poll_check(a, "pollB", 0x55, 2)
        if j + na == 24 - 2: poll_issue(a, "pollC")
        if j + na == 24:
            a.stamp(12); poll_check(a, "pollC", 0x55, 3); a.stamp(5)
        if j + na < 28: a_load(a, areg[j % na], order[j + na], f"A{j+na}")
    a.stamp(13)
    write_partial(a, True)

def epoch_update(a):
    skip = a.newlabel("L_eskip"); spin = a.newlabel("L_espin"); go = a.newlabel("L_ego")
    a.L(f"""
    s_or_b32 s{t0}, s2, s{sWV}
    s_cbranch_scc1 {skip}
    """)
    st = a.state()
    a.L(f"""
    v_lshlrev_b32 v8, 6, v{vLane}
    s_mov_b32 s{t2}, {RG + 4}
    s_mov_b32 s{t5}, 0
    """)
    a.label(spin)
    a.L(f"""
    buffer_load_dword v9, v8, {srd(SWS)}, s{t2} offen sc1
    v_add_u32 v13, 4096, v8
    buffer_load_dword v10, v13, {srd(SWS)}, s{t2} offen sc1
    v_add_u32 v13, 8192, v8
    buffer_load_dword v11, v13, {srd(SWS)}, s{t2} offen sc1
    v_add_u32 v13, 12288, v8
    buffer_load_dword v12, v13, {srd(SWS)}, s{t2} offen sc1
    s_waitcnt vmcnt(0)
    v_xor_b32 v9, s{sT}, v9
    v_xor_b32 v10, s{sT}, v10
    v_xor_b32 v11, s{sT}, v11
    v_xor_b32 v12, s{sT}, v12
    v_or3_b32 v9, v9, v10, v11
    v_or_b32 v9, v9, v12
    v_cmp_ne_u32 vcc, 0, v9
    s_cbranch_vccz {go}
    s_sleep 8
    s_add_u32 s{t5}, s{t5}, 1
    s_cmp_lt_u32 s{t5}, 0x8000
    s_cbranch_scc1 {spin}
    """)
    a.label(go)
    a.L(f"""
    s_add_u32 s{t0}, s{sE}, 1
    s_mov_b32 s{t2}, {EP}
    """)
    flag_store(a, t2, f"s{t0}")
    a.restore(st)
    a.label(skip)

def phase3_s(a):
    a.stamp(9)
    cnt_add(a, 16)
    a.mk_srd(SC, sWO, 512 * 1024)
    a.L(f"""
    s_lshl_b32 s{sPw}, s{sMI}, 17
    s_lshl_b32 s{t1}, s{sNT3}, 7
    s_add_u32 s{sPw}, s{sPw}, s{t1}
    s_lshl_b32 s{sRing}, s{sMI}, 14
    """)
    cnt_wait(a, 0)
    for j in range(16):
        a.dma(SC, vB3o, sPw, sRing, j * 1024, "Wo")
        if j < 15: a.I(f"s_add_u32 s{sPw}, s{sPw}, 8192")
    p3_addr(a, False)
    poll_setup(a, False)
    a.wait(vm="own")
    a.stamp(10)
    publish_flag(a, 3)
    if a.p3delay: delay_until(a)
    final_loads(a)
    if SDELAY:
        a.p3delay = SDELAY; delay_until(a); a.p3delay = 0
    poll_issue(a, "pollO")
    a.wait(vm="Wo")
    for j in range(8):
        b = P_B + 8 * j; o = (j >> 1) * 4096 + (j & 1) * 512
        for nt in range(2):
            a.I(f"ds_read_b64_tr_b16 {vr(b+4*nt,2)}, v{vB3a+nt} offset:{o}", f"b{j}")
            a.I(f"ds_read_b64_tr_b16 {vr(b+4*nt+2,2)}, v{vB3a+nt} offset:{o+1024}", f"b{j}")
        if j % 2 == 1: a.wait(lg=f"b{j-1}")
    epoch_update(a)
    a.stamp(11)
    poll_check(a, "pollO", 0x55, 3)
    a.stamp(12)
    for j in range(8): a_load(a, P_A_s + 8 * j, j, f"A{j}")
    a.wait(lg="all")
    for j in range(8):
        a.wait(vm=f"A{j}")
        mfma4(a, P_B + 8 * j, P_A_s + 8 * j, j == 0)
    a.stamp(13)
    write_partial(a, False)

def final(a):
    a.wait(lg="all")
    a.I("s_barrier")
    a.stamp(14)
    a.L(f"""
    v_and_b32 v126, 7, v{vLane}
    v_lshrrev_b32 v127, 3, v{vLane}
    s_lshl_b32 s{t0}, s{sMI}, 3
    v_add_u32 v127, s{t0}, v127
    v_lshlrev_b32 v2, 1, v126
    v_xor_b32 v127, v127, v2
    v_lshlrev_b32 v127, 4, v127
    s_lshl_b32 s{t1}, s{sH}, 3
    v_add_u32 v126, s{t1}, v126
    v_lshl_add_u32 v2, v126, 10, v127
    v_add_u32 v3, {FR}, v2
    v_add_u32 v4, {65536 - 12*1024}, v2
    v_cmp_le_u32 vcc, 12, v126
    v_cndmask_b32 v3, v3, v4, vcc
    """)
    for i in range(4):
        a.I(f"ds_read_b128 {vr(128+8*i,4)}, v3 offset:{FRS*i}", f"f{i}")
        a.I(f"ds_read_b128 {vr(132+8*i,4)}, v3 offset:{FRS*i+512}", f"f{i}")
    for i in range(4):
        a.I(f"ds_read_b128 {vr(160+8*i,4)}, v2 offset:{16384*i}", f"s{i}")
        a.I(f"ds_read_b128 {vr(164+8*i,4)}, v2 offset:{16384*i+512}", f"s{i}")
    a.wait(vm="fin")
    a.L(f"""
    v_and_b32 v{FRG}, 0xffff0000, v{FRG}
    v_rcp_f32 v{FRG}, v{FRG}
    """)
    for i in range(4):
        a.I(f"v_lshlrev_b32 v{64+2*i}, 16, v{FB+i}")
        a.I(f"v_and_b32 v{65+2*i}, 0xffff0000, v{FB+i}")
        a.I(f"v_lshlrev_b32 v{72+2*i}, 16, v{FX+i}")
        a.I(f"v_and_b32 v{73+2*i}, 0xffff0000, v{FX+i}")
    a.I(f"v_mul_f32 v{FRG}, v{FRG}, v{FRG}")
    a.wait(lg="f1")
    for e in range(8): a.I(f"v_add_f32 v{128+e}, v{128+e}, v{136+e}")
    a.wait(lg="f3")
    for e in range(8): a.I(f"v_add_f32 v{144+e}, v{144+e}, v{152+e}")
    for e in range(8): a.I(f"v_add_f32 v{128+e}, v{128+e}, v{144+e}")
    for e in range(8): a.I(f"v_fma_f32 v{128+e}, v{128+e}, v{FRG}, v{64+e}")
    for e in range(8): a.I(f"v_mul_f32 v{136+e}, 0xbfb8aa3b, v{128+e}")
    for e in range(8): a.I(f"v_exp_f32 v{136+e}, v{136+e}")
    a.wait(lg="s1")
    for e in range(8): a.I(f"v_add_f32 v{160+e}, v{160+e}, v{168+e}")
    for e in range(8): a.I(f"v_add_f32 v{136+e}, 1.0, v{136+e}")
    for e in range(8): a.I(f"v_rcp_f32 v{136+e}, v{136+e}")
    a.wait(lg="s3")
    for e in range(8): a.I(f"v_add_f32 v{176+e}, v{176+e}, v{184+e}")
    for e in range(8): a.I(f"v_add_f32 v{160+e}, v{160+e}, v{176+e}")
    for e in range(8): a.I(f"v_mul_f32 v{128+e}, v{128+e}, v{136+e}")
    for e in range(8): a.I(f"v_fma_f32 v{128+e}, v{128+e}, v{160+e}, v{72+e}")
    for q in range(4): a.I(f"v_cvt_pk_bf16_f32 v{144+q}, v{128+2*q}, v{129+2*q}")
    a.I(f"buffer_store_dwordx4 {vr(144,4)}, v{vOo}, {srd(SO)}, 0 offen", "out")
    a.stamp(15)
    if PADTO:
        a.p3delay = PADTO; delay_until(a); a.p3delay = 0
    if a.stamps and DBGST:
        a.mk_srd(SB, sDBG, 256)
        a.L(f"""
        v_not_b32 v3, v63
        v_cmp_eq_u32 vcc, 0, v{vLane}
        v_lshlrev_b32 v2, 2, v{vLane}
        v_cndmask_b32 v3, v63, v3, vcc
        s_and_b32 s{t0}, s{sWV}, 3
        s_cmp_eq_u32 s{t0}, 0
        s_cbranch_scc0 L_end
        s_mov_b64 exec, 0xffff
        buffer_atomic_umax v3, v2, {srd(SB)}, 0 offen sc1
        """)
    elif a.stamps:
        a.L(f"""
        s_lshl_b32 s{t0}, s2, 3
        s_add_u32 s{t0}, s{t0}, s{sWV}
        s_lshl_b32 s{t0}, s{t0}, 8
        s_add_u32 s{t0}, s{t0}, {STAMP_OFF}
        s_add_u32 s{t2}, s{sWSp}, s{t0}
        s_addc_u32 s{t3}, s{sWSp+1}, 0
        v_lshlrev_b32 v2, 2, v{vLane}
        global_store_dword v2, v63, s[{t2}:{t3}]
        s_add_u32 s{t2}, s{t2}, 0x100000
        s_addc_u32 s{t3}, s{t3}, 0
        global_store_dword v2, v0, s[{t2}:{t3}]
        """)

QP = 48
QP1 = 112
def epi_kv(a, base, pend=None):
    for t in range(2):
        for r in range(16):
            a.I(f"v_mul_f32 v{ACC+16*t+r}, v{ACC+16*t+r}, v{vR}")
            if pend and r % 3 == 2: pend.pop(0)()
        for q in range(8): a.I(f"v_cvt_pk_bf16_f32 v{T2+8*t+q}, v{ACC+16*t+2*q}, v{ACC+16*t+2*q+1}")
    while pend: pend.pop(0)()
    a.L(f"""
    v_and_b32 v56, 31, v{vLane}
    s_lshl_b32 s{t0}, s{sMI}, 5
    s_add_u32 s{t0}, s{t0}, 16
    v_add_u32 v56, s{t0}, v56
    v_mul_u32_u24 v56, {KVROW}, v56
    v_lshrrev_b32 v57, 5, v{vLane}
    v_lshl_add_u32 v56, v57, 5, v56
    v_add_u32 v56, {base}, v56
    """)
    for t in range(2):
        a.I(f"ds_write_b128 v56, {vr(T2+8*t,4)} offset:{64*t}", "kvw")
        a.I(f"ds_write_b128 v56, {vr(T2+8*t+4,4)} offset:{64*t+16}", "kvw")

def halo_store(a, kv, tag):
    a.L(f"""
    s_lshl_b32 s{t1}, s{sG}, 3
    s_add_u32 s{t1}, s{t1}, s{sJ}
    s_lshl_b32 s{t0}, s{t1}, 12
    s_add_u32 s{t0}, s{t0}, {HK + kv*2048}
    s_lshl_b32 s{sFa}, s{t1}, 7
    s_add_u32 s{sFa}, s{sFa}, {HF + kv*4}
    s_mov_b32 s{sFv}, s{sT}
    s_cmp_eq_u32 s{sMI}, 3
    s_cselect_b32 s{t0}, s{t0}, {OOB}
    s_cselect_b32 s{sFa}, s{sFa}, {OOB}
    v_and_b32 v56, 15, v{vLane}
    v_lshlrev_b32 v56, 6, v56
    v_lshl_add_u32 v56, v57, 5, v56
    s_mov_b32 exec_lo, 0xffff0000
    s_mov_b32 exec_hi, 0xffff0000
    """)
    for t in range(2):
        a.I(f"buffer_store_dwordx4 {vr(T2+8*t,4)}, v56, {srd(SWS)}, s{t0} offen offset:{1024*t} sc1", tag)
        a.I(f"buffer_store_dwordx4 {vr(T2+8*t+4,4)}, v56, {srd(SWS)}, s{t0} offen offset:{1024*t+16} sc1", tag)
    a.I("s_mov_b64 exec, -1")

def epi_q(a, dst):
    for r in range(16): a.I(f"v_mul_f32 v{ACCB+r}, v{ACCB+r}, v{vR}")
    for q in range(8): a.I(f"v_cvt_pk_bf16_f32 v{dst+q}, v{ACCB+2*q}, v{ACCB+2*q+1}")

def halo_fetch(a):
    skip = a.newlabel("L_hskip"); wr = a.newlabel("L_hwr"); spin = a.newlabel("L_hspin"); got = a.newlabel("L_hgot")
    a.L(f"""
    s_cmp_lg_u32 s{sMI}, 0
    s_cbranch_scc1 {skip}
    """)
    st = a.state()
    for r in range(128, 144): a.I(f"v_mov_b32 v{r}, 0")
    a.L(f"""
    s_cmp_eq_u32 s{sG}, 0
    s_cbranch_scc1 {wr}
    s_sub_u32 s{t2}, s{sG}, 1
    s_lshl_b32 s{t2}, s{t2}, 3
    s_add_u32 s{t2}, s{t2}, s{sJ}
    s_lshl_b32 s{t3}, s{t2}, 7
    s_add_u32 s{t3}, s{t3}, {HF}
    s_mov_b32 s{t5}, 0
    """)
    a.label(spin)
    a.L(f"""
    s_load_dwordx2 s[14:15], s[{sWSp}:{sWSp+1}], s{t3} glc
    s_waitcnt lgkmcnt(0)
    s_xor_b32 s14, s14, s{sT}
    s_xor_b32 s15, s15, s{sT}
    s_or_b32 s14, s14, s15
    s_cbranch_scc0 {got}
    s_sleep 1
    s_add_u32 s{t5}, s{t5}, 1
    s_cmp_lt_u32 s{t5}, 0x20000
    s_cbranch_scc1 {spin}
    """)
    a.label(got)
    a.L(f"""
    s_lshl_b32 s{t2}, s{t2}, 12
    s_add_u32 s{t2}, s{t2}, {HK}
    buffer_load_dwordx4 v[128:131], v{vL16}, {srd(SWS)}, s{t2} offen sc1
    buffer_load_dwordx4 v[132:135], v{vL16}, {srd(SWS)}, s{t2} offen offset:1024 sc1
    buffer_load_dwordx4 v[136:139], v{vL16}, {srd(SWS)}, s{t2} offen offset:2048 sc1
    buffer_load_dwordx4 v[140:143], v{vL16}, {srd(SWS)}, s{t2} offen offset:3072 sc1
    s_waitcnt vmcnt(0)
    """)
    a.label(wr)
    a.L(f"""
    v_lshrrev_b32 v56, 2, v{vLane}
    v_mul_u32_u24 v56, {KVROW}, v56
    v_and_b32 v57, 3, v{vLane}
    v_lshl_add_u32 v56, v57, 4, v56
    v_add_u32 v56, {KB}, v56
    ds_write_b128 v56, v[128:131]
    ds_write_b128 v56, v[132:135] offset:64
    ds_write_b128 v56, v[136:139] offset:{VB-KB}
    ds_write_b128 v56, v[140:143] offset:{VB-KB+64}
    s_waitcnt lgkmcnt(0)
    """)
    a.restore(st)
    a.label(skip)

def attention(a):
    KR = 128
    LA = 64; LB = 72; PL = 80; PH = 88; O = 96; OP = 120
    a.L(f"""
    v_and_b32 v56, 31, v{vLane}
    s_lshl_b32 s{t0}, s{sMI}, 5
    s_add_u32 s{t0}, s{t0}, 2
    v_add_u32 v58, s{t0}, v56
    v_mul_u32_u24 v58, {KVROW}, v58
    v_lshrrev_b32 v57, 5, v{vLane}
    s_lshl_b32 s{t0}, s{sTile}, 6
    s_add_u32 s{t0}, s{t0}, {KB}
    v_add_u32 v58, s{t0}, v58
    v_lshl_add_u32 v59, v57, 4, v58
    v_add_u32 v59, {VB-KB}, v59
    v_lshl_add_u32 v58, v57, 5, v58
    """)
    def kread(w):
        o = (7 - w) * 2 * KVROW
        a.I(f"ds_read_b128 {vr(KR+8*w,4)}, v58 offset:{o}", f"k{w}")
        a.I(f"ds_read_b128 {vr(KR+8*w+4,4)}, v58 offset:{o+16}", f"k{w}")
    def vread(w):
        o = (7 - w) * 2 * KVROW
        a.I(f"ds_read_b128 {vr(192+8*w,4)}, v59 offset:{o}", f"v{w}")
        a.I(f"ds_read_b128 {vr(192+8*w+4,4)}, v59 offset:{o+32}", f"v{w}")
    seq = [("k", w) for w in range(8)] + [("v", w) for w in range(8)]
    def nxt():
        if seq:
            t, w = seq.pop(0); (kread if t == "k" else vread)(w)
    for _ in range(4): nxt()
    for w in range(8):
        a.wait(lg=f"k{w}")
        for i in range(4):
            a.I(f"v_dot2_f32_bf16 v{LA+w}, v{QP+i}, v{KR+8*w+i}, {'0' if i == 0 else 'v%d' % (LA+w)}")
            a.I(f"v_dot2_f32_bf16 v{LB+w}, v{QP+4+i}, v{KR+8*w+4+i}, {'0' if i == 0 else 'v%d' % (LB+w)}")
        nxt()
    for w in range(8): a.I(f"v_permlane32_swap_b32 v{LA+w}, v{LB+w}")
    for w in range(8): a.I(f"v_add_f32 v{LA+w}, v{LA+w}, v{LB+w}")
    nxt(); nxt()
    nom = a.newlabel("L_nomask")
    a.L(f"""
    s_or_b32 s{t0}, s{sG}, s{sMI}
    s_cmp_lg_u32 s{t0}, 0
    s_cbranch_scc1 {nom}
    v_mov_b32 v57, 0xff800000
    """)
    for w in range(1, 8):
        a.I(f"v_cmp_gt_u32 vcc, {2*w}, v56")
        a.I(f"v_cndmask_b32 v{LA+w}, v{LA+w}, v57, vcc")
    a.label(nom)
    a.fence(2)
    a.L(f"""
    v_max3_f32 v57, v{LA}, v{LA+1}, v{LA+2}
    v_max3_f32 v56, v{LA+3}, v{LA+4}, v{LA+5}
    v_max3_f32 v57, v57, v{LA+6}, v{LA+7}
    s_mov_b32 s{t0}, 0x3eb8aa3b
    v_max_f32 v57, v57, v56
    """)
    nxt(); nxt()
    for w in range(8): a.I(f"v_sub_f32 v{LA+w}, v{LA+w}, v57")
    for w in range(8): a.I(f"v_mul_f32 v{LA+w}, s{t0}, v{LA+w}")
    for w in range(8): a.I(f"v_exp_f32 v{LA+w}, v{LA+w}")
    a.L(f"""
    v_add_f32 v57, v{LA}, v{LA+1}
    v_add_f32 v{LB}, v{LA+2}, v{LA+3}
    v_add_f32 v{LB+1}, v{LA+4}, v{LA+5}
    v_add_f32 v56, v{LA+6}, v{LA+7}
    v_add_f32 v57, v57, v{LB}
    v_add_f32 v56, v{LB+1}, v56
    v_add_f32 v57, v57, v56
    v_rcp_f32 v57, v57
    s_lshl_b32 s{t0}, s{sJ}, 2
    s_lshl_b32 s{t1}, s{sTile}, 1
    s_add_u32 s{t0}, s{t0}, s{t1}
    s_lshl_b32 s{t0}, s{t0}, 10
    s_add_u32 s{t0}, s{t0}, s{sAct}
    """)
    for w in range(8): a.I(f"v_mul_f32 v{LA+w}, v{LA+w}, v57")
    for w in range(8): a.I(f"v_cvt_pk_bf16_f32 v{PL+w}, v{LA+w}, 0")
    for w in range(8): a.I(f"v_lshlrev_b32 v{PH+w}, 16, v{PL+w}")
    for w in range(8):
        a.wait(lg=f"v{w}")
        for i in range(8):
            a.I(f"v_dot2_f32_bf16 v{O+2*i}, v{192+8*w+i}, v{PL+w}, {'0' if w == 0 else 'v%d' % (O+2*i)}")
            a.I(f"v_dot2_f32_bf16 v{O+2*i+1}, v{192+8*w+i}, v{PH+w}, {'0' if w == 0 else 'v%d' % (O+2*i+1)}")
    for q in range(8): a.I(f"v_cvt_pk_bf16_f32 v{OP+q}, v{O+2*q}, v{O+2*q+1}")
    a.I(f"buffer_store_dwordx4 {vr(OP,4)}, v{vL16}, {srd(SWS)}, s{t0} offen {STMOD}", "own")
    a.I(f"buffer_store_dwordx4 {vr(OP+4,4)}, v{vL16}, {srd(SWS)}, s{t0} offen offset:1024 {STMOD}", "own")

def build(stamps=False, p3delay=0, fine=True):
    a = K(stamps); a.p3delay = p3delay; a.fine = fine
    a.raw(f"; @launch grid=(256,1,1) block=(512,1,1) lds={LDS_BYTES}")
    a.raw('.amdgcn_target "amdgcn-amd-amdhsa--gfx950"\n.text')
    a.raw(f".globl {KN}\n.p2align 8\n.type {KN},@function\n{KN}:")
    prologue(a)
    prep(a)
    a.L(f"s_cmp_ge_u32 s{sJ}, 8\ns_cbranch_scc0 L_qkv")
    st0 = a.state()
    a.L(f"s_cmp_eq_u32 s{sH}, 0\ns_cbranch_scc0 L_ffn_h1")
    st1 = a.state()
    pend = passA(a, True, 0)
    epi_h(a, ACC, sKsA, 0, "p1", TMP, pend)
    epi_h(a, ACC + 16, sKsA, 2, "p1", T2)
    set_aug(a, vAug4)
    def hM(): a.wait(vm=["wb2", "wb3"]); a.I("s_barrier")
    def hp1(): a.wait(vm="p1"); publish_flag(a, 1)
    tile_body(a, 2048, 512, {12: hM, 28: hp1})
    a.stamp(7)
    epi_h(a, ACCB, sKsP, 0, "p2", TMP)
    set_aug(a, vAug5)
    a.I(f"v_xor_b32 v{vPa}, 64, v{vPa}")
    call(a, "L_tileP", TILE_LAST)
    cnt_add(a, 1)
    epi_h(a, ACCB, sKsP, 2, "p2", T2)
    a.stamp(8)
    a.L(f"""
    v_lshrrev_b32 v126, 5, v{vLane}
    v_bfe_u32 v127, v{vLane}, 2, 2
    v_lshl_add_u32 v126, v126, 3, v127
    v_lshlrev_b32 v126, 6, v126
    v_bfe_u32 v127, v{vLane}, 4, 1
    v_lshl_add_u32 v126, v127, 5, v126
    v_and_b32 v127, 3, v{vLane}
    v_lshl_add_u32 v126, v127, 3, v126
    v_add_u32 v{vPa}, 0x10000, v126
    """)
    set_aug(a, vAug6)
    def hp2(): a.wait(vm="p2"); publish_flag(a, 2)
    tile_body(a, 1024, 256, {26: hp2})
    epi_h(a, ACCB, sKsS, 0, "own", TMP)
    a.I("s_branch L_p3s")
    a.restore(st1)
    a.label("L_ffn_h1")
    passA(a, True, 1)
    pend = f_early(a)
    epi_h(a, ACC, sKsA, 4, "own", TMP, pend)
    epi_h(a, ACC + 16, sKsA, 6, "own", T2)
    a.L(f"""
    s_mov_b32 s{sFa}, s{sFlg}
    s_add_u32 s{sFv}, s{sT}, 1
    s_barrier
    s_branch L_p3f
    """)
    vqF = list(a.vq)
    a.restore(st0)
    a.label("L_qkv")
    a.L(f"s_cmp_eq_u32 s{sH}, 0\ns_cbranch_scc0 L_qkv_h1")
    st1 = a.state()
    passA(a, False, 0)
    epi_kv(a, KB)
    halo_store(a, 0, "hst")
    set_aug(a, vAug4)
    def hMq(): a.wait(vm="wb2", lg="kvw"); a.I("s_barrier")
    def hh(): a.wait(vm="hst"); flag_store(a, sFa, f"s{sFv}")
    tile_body(a, 2048, 512, {12: hMq, 28: hh})
    a.stamp(7)
    epi_q(a, QP)
    set_aug(a, vAug6)
    a.I(f"v_xor_b32 v{vPa}, 64, v{vPa}")
    call(a, "L_tileP", TILE_LAST)
    cnt_add(a, 1)
    epi_q(a, QP1)
    a.stamp(8)
    halo_fetch(a)
    a.I(f"s_mov_b32 s{sTile}, 0")
    call(a, "L_attn", ["s_nop 1"])
    for q in range(8): a.I(f"v_mov_b32 v{QP+q}, v{QP1+q}")
    a.I(f"s_mov_b32 s{sTile}, 1")
    call(a, "L_attn", ["s_nop 1"])
    a.I("s_branch L_p3s")
    a.restore(st1)
    a.label("L_qkv_h1")
    passA(a, False, 1)
    pend = f_early(a)
    epi_kv(a, VB, pend)
    halo_store(a, 1, "own")
    a.wait(lg="kvw")
    a.I("s_barrier")
    exp = ["B%d" % j for j in range(NB) for _ in range(2)] + ["own"] * 4
    assert a.vq[-len(exp):] == exp, a.vq
    assert vqF[-len(exp):] == exp, vqF
    a.label("L_p3f")
    a.vq = list(exp); a.lq = []
    a.fence(2)
    phase3_f(a)
    a.I("s_branch L_final")
    a.label("L_p3s")
    a.vq = ["own"]; a.lq = []
    a.fence(2)
    phase3_s(a)
    a.label("L_final")
    a.vq = ["fin"]
    final(a)
    a.label("L_end")
    a.I("s_endpgm")
    a.label("L_tileP")
    a.hist = []; a.fence(2); a.lq = []
    tile_body(a, 2048, 512, {})
    a.I(f"s_setpc_b64 s[{sRet}:{sRet+1}]")
    a.label("L_attn")
    a.hist = []; a.fence(2); a.lq = []
    attention(a)
    a.I(f"s_setpc_b64 s[{sRet}:{sRet+1}]")
    a.raw(".p2align 8\n.rept 64\n  s_nop 0\n.endr\nL_codeend:")
    a.raw(f""".section .rodata,"a"
.p2align 6
.amdhsa_kernel {KN}
  .amdhsa_next_free_vgpr 256
  .amdhsa_next_free_sgpr 102
  .amdhsa_accum_offset 256
  .amdhsa_group_segment_fixed_size 0
  .amdhsa_kernarg_size 88
  .amdhsa_user_sgpr_count 2
  .amdhsa_user_sgpr_kernarg_segment_ptr 1
  .amdhsa_system_sgpr_workgroup_id_x 1
.end_amdhsa_kernel""")
    return "\n".join(a.out) + "\n", a.nins

NA = 7
if __name__ == "__main__":
    ap = argparse.ArgumentParser()
    ap.add_argument("-o", default=f"cdna_kernels/{NAME}.s")
    ap.add_argument("--stamps", action="store_true")
    ap.add_argument("--p3delay", type=int, default=0)
    ap.add_argument("--coarse", action="store_true")
    ap.add_argument("--set", action="append", default=[])
    args = ap.parse_args()
    for kv in args.set:
        k_, v_ = kv.split("=", 1); globals()[k_] = eval(v_)
    txt, n = build(args.stamps, args.p3delay, not args.coarse)
    open(args.o, "w").write(txt)
    print("instructions:", n)
```
